```python
import torch

def _softmax(x, axis=-1):
    return torch.softmax(x, dim=axis)
def _gelu(x):
    return torch.nn.functional.gelu(x, approximate="tanh")
def _silu(x):
    return torch.nn.functional.silu(x)
def _sigmoid(x):
    return torch.sigmoid(x)
def _layernorm(x, axis=-1, eps=1e-5):
    m = x.mean(dim=axis, keepdim=True)
    v = x.var(dim=axis, keepdim=True, unbiased=False)
    return (x - m) / torch.sqrt(v + eps)
def _scatter_add(tgt, idx, src, axis=0):
    return tgt.clone().index_add_(axis, idx, src)
def _segment_sum(src, seg, n):
    out = torch.zeros((n,) + src.shape[1:], dtype=src.dtype)
    return out.index_add_(0, seg, src)
def _pad(x, pw):
    flat = tuple(v for pair in reversed(pw) for v in pair)
    return torch.nn.functional.pad(x, flat)

kernel_name = 'recurrent_scan__linear_kernel_hedgehog__mixer_s_mlp__prompt'

def setup_inputs():

    _w = (lambda a: (lambda t: t.to(torch.bfloat16) if t.is_floating_point() else t)(torch.as_tensor(a)))
    def _A_setup():
        B, S, D, H = 1, 2048, 512, 32
        Dh = D // H
        return {
            "x": _w((lambda *s: torch.randn(*s, dtype=torch.bfloat16) * 0.05)(B, S, D)),
            "wqkv": _w((lambda *s: torch.randn(*s, dtype=torch.bfloat16) * 0.2)(D, 3 * D)),
            "w_phi": _w((lambda *s: torch.randn(*s, dtype=torch.bfloat16) * 0.2)(H, Dh, Dh) * (Dh ** -0.5)),
            "wo": _w((lambda *s: torch.randn(*s, dtype=torch.bfloat16) * 0.05)(D, D)),
        }
    _A_in = _A_setup()

    def _B_setup():
        B, S, D, F = 1, 2048, 512, 1792
        return {
            "x":  _w((lambda *s: torch.randn(*s, dtype=torch.bfloat16) * 0.05)(B, S, D)),
            "w1": _w((lambda *s: torch.randn(*s, dtype=torch.bfloat16) * 0.8)(D, D) * (D ** -0.5)),
            "w2": _w((lambda *s: torch.randn(*s, dtype=torch.bfloat16) * 0.8)(D, D) * (D ** -0.5)),
            "w3": _w((lambda *s: torch.randn(*s, dtype=torch.bfloat16) * 0.8)(D, F) * (D ** -0.5)),
            "w4": _w((lambda *s: torch.randn(*s, dtype=torch.bfloat16) * 0.8)(F, D) * (F ** -0.5)),
        }
    _B_in = _B_setup()

    return {
        "A_x": _A_in["x"],
        "A_wqkv": _A_in["wqkv"],
        "A_w_phi": _A_in["w_phi"],
        "A_wo": _A_in["wo"],
        "B_x": _B_in["x"],
        "B_w1": _B_in["w1"],
        "B_w2": _B_in["w2"],
        "B_w3": _B_in["w3"],
        "B_w4": _B_in["w4"],
    }

def reference(A_x, A_wqkv, A_w_phi, A_wo, B_x, B_w1, B_w2, B_w3, B_w4):
    def _A_ref(x, wqkv, w_phi, wo):
        B, S, D = x.shape
        H = 32; Dh = D // H
        qkv = (lambda x, *d: x.permute(*d))((x @ wqkv).reshape(B, S, 3, H, Dh), 2, 0, 3, 1, 4)
        q, k, v = qkv[0], qkv[1], qkv[2]
        pq = torch.einsum("bhsd,hdf->bhsf", q, w_phi)
        pk = torch.einsum("bhsd,hdf->bhsf", k, w_phi)
        phi_q = torch.concatenate([_softmax(pq, axis=-1), _softmax(-pq, axis=-1)], axis=-1)
        phi_k = torch.concatenate([_softmax(pk, axis=-1), _softmax(-pk, axis=-1)], axis=-1)
        kv = torch.einsum("bhsf,bhsd->bhfd", phi_k, v)
        z  = torch.einsum("bhsf->bhf", phi_k)
        num = torch.einsum("bhqf,bhfd->bhqd", phi_q, kv)
        den = torch.einsum("bhqf,bhf->bhq", phi_q, z)[..., None] + 1e-6
        o = num / den
        return (lambda x, *d: x.permute(*d))(o, 0, 2, 1, 3).reshape(B, S, D) @ wo

    def _B_ref(x, w1, w2, w3, w4):
        B, S, D = x.shape
        h = _gelu(_layernorm(x, axis=-1) @ w1)
        c = D // 4
        g0 = _pad(h[:, :, 0*c:1*c], ((0, 0), (1, 0), (0, 0)))[:, :S, :]
        g1 = _pad(h[:, :, 1*c:2*c], ((0, 0), (0, 1), (0, 0)))[:, 1:, :]
        g2 = _pad(h[:, :, 2*c:3*c], ((0, 0), (2, 0), (0, 0)))[:, :S, :]
        g3 = _pad(h[:, :, 3*c:   ], ((0, 0), (0, 2), (0, 0)))[:, 2:, :]
        hs = torch.concatenate([g0, g1, g2, g3], axis=-1) @ w2
        x1 = x + hs
        h2 = _gelu(_layernorm(x1, axis=-1) @ w3) @ w4
        return x1 + h2

    x = A_x
    xn = _layernorm(x, axis=-1)
    s = _A_ref(xn, A_wqkv, A_w_phi, A_wo)
    g = _silu(_B_ref(xn, B_w1, B_w2, B_w3, B_w4))
    return x + s * g
```

```python
import re, copy

REG_RE = re.compile(r'^(-|neg\()?(abs\()?\|?([vas])(?:(\d+)|\[(\d+):(\d+)\])\|?\)?\)?$')


def regs_of(tok):
    tok = tok.strip()
    if tok in ('vcc',):
        return ['vcc']
    if tok in ('vcc_lo', 'vcc_hi'):
        return ['vcc']
    if tok in ('exec', 'exec_lo', 'exec_hi'):
        return ['exec']
    if tok == 'm0':
        return ['m0']
    if tok == 'scc':
        return ['scc']
    m = REG_RE.match(tok)
    if not m:
        return []
    k = m.group(3)
    if m.group(4) is not None:
        return [k + m.group(4)]
    return [k + str(i) for i in range(int(m.group(5)), int(m.group(6)) + 1)]


TRANS = ('v_exp_f32', 'v_log_f32', 'v_rcp_f32', 'v_rsq_f32', 'v_sqrt_f32', 'v_sin_f32', 'v_cos_f32')
RMW = ('v_fmac_f32', 'v_dot2c_f32_bf16', 'v_pk_fmac_f16', 'v_fmac_f32_e32', 'v_dot2c_f32_bf16_e32')


class Ins:
    __slots__ = ('text', 'op', 'reads', 'writes', 'cls', 'passes', 'srcc', 'srcab', 'wide_data', 'is_dma', 'sreads_vmem')

    def __init__(s, text):
        s.text = text
        t = text.split(';')[0].strip()
        parts = t.split(None, 1)
        op = parts[0]
        s.op = op
        rest = parts[1] if len(parts) > 1 else ''
        ops = []
        depth = 0
        cur = ''
        for ch in rest:
            if ch == '[':
                depth += 1
            if ch == ']':
                depth -= 1
            if ch == ',' and depth == 0:
                ops.append(cur.strip())
                cur = ''
            else:
                cur += ch
        if cur.strip():
            ops.append(cur.strip())
        mods = []
        if ops:
            sp = ops[-1].split()
            ops[-1] = sp[0]
            mods = sp[1:]
        R = lambda i: regs_of(ops[i]) if i < len(ops) else []
        allr = lambda a: [r for i in range(a, len(ops)) for r in R(i)]
        s.reads, s.writes = [], []
        s.cls = 'other'
        s.passes = 0
        s.srcc = []
        s.srcab = []
        s.wide_data = []
        s.is_dma = False
        base = op.replace('_e32', '').replace('_e64', '').replace('_dpp', '').replace('_sdwa', '')
        if op.startswith('v_mfma'):
            s.cls = 'mfma'
            s.passes = 8 if '32x32' in op else 4
            s.writes = R(0)
            s.srcab = R(1) + R(2)
            s.srcc = R(3)
            s.reads = s.srcab + s.srcc
        elif op.startswith('v_'):
            s.cls = 'valu'
            if base in TRANS:
                s.cls = 'trans'
            if base.startswith('v_dot2'):
                s.cls = 'dot'
            if base.startswith('v_permlane'):
                s.cls = 'permlane'
                s.writes = R(0) + R(1)
                s.reads = R(0) + R(1)
            elif base.startswith('v_cmp'):
                s.writes = R(0)
                s.reads = allr(1)
            elif base in ('v_readfirstlane_b32', 'v_readlane_b32'):
                s.cls = 'readlane'
                s.writes = R(0)
                s.reads = allr(1)
            elif base in ('v_add_co_u32', 'v_sub_co_u32', 'v_addc_co_u32', 'v_subb_co_u32'):
                s.writes = R(0) + R(1)
                s.reads = allr(2)
            else:
                s.writes = R(0)
                s.reads = allr(1)
                if base in RMW:
                    s.reads += R(0)
                if base == 'v_cndmask_b32' and len(ops) == 3:
                    s.reads += ['vcc']
            if any(m.startswith(('row_', 'quad_perm', 'wave_')) for m in mods):
                s.cls = 'dpp'
                s.reads += R(0)
        elif op.startswith('ds_'):
            s.cls = 'ds'
            if op.startswith('ds_read') or op.startswith('ds_bpermute') or op.startswith('ds_swizzle') or op.startswith('ds_permute'):
                s.writes = R(0)
                s.reads = allr(1)
            else:
                s.reads = allr(0)
        elif op.startswith('buffer_') or op.startswith('global_'):
            s.cls = 'vmem'
            if 'lds' in mods or '_lds_' in op:
                s.is_dma = True
                s.reads = allr(0) + ['m0']
            elif '_load' in op:
                s.writes = R(0)
                s.reads = allr(1)
                if 'd16' in op:
                    s.reads += R(0)
            elif op.startswith('buffer_store') or op.startswith('buffer_atomic'):
                s.reads = allr(0)
                if 'x4' in op or 'x3' in op:
                    s.wide_data = R(0)
            elif op.startswith('global_store'):
                s.reads = allr(0)
                if 'x4' in op or 'x3' in op:
                    s.wide_data = R(1)
            else:
                s.reads = allr(0)
        elif op.startswith('s_load') or op.startswith('s_buffer_load') or op in ('s_memtime', 's_memrealtime'):
            s.cls = 'smem'
            s.writes = R(0)
            s.reads = allr(1)
        elif op.startswith('s_'):
            s.cls = 'salu'
            if op.startswith('s_cmp') or op.startswith('s_bitcmp'):
                s.reads = allr(0)
                s.writes = ['scc']
            elif op.startswith('s_cbranch') or op in ('s_branch', 's_barrier', 's_nop', 's_waitcnt', 's_endpgm', 's_sleep', 's_setprio'):
                pass
            else:
                s.writes = R(0)
                s.reads = allr(1)
                if 'saveexec' in op:
                    s.writes += ['exec']
                    s.reads += ['exec']
        else:
            raise ValueError('unknown instr ' + text)

    def is_valu(s):
        return s.cls in ('valu', 'trans', 'dot', 'permlane', 'readlane', 'dpp')


def need_states(p, c):
    n = 0
    pw = set(p.writes)
    cr = set(c.reads)
    cw = set(c.writes)
    vec = lambda S: {r for r in S if r[0] in 'va' and r != 'vcc'}
    sca = lambda S: {r for r in S if r[0] == 's' or r == 'vcc'}
    if p.is_valu():
        pv = vec(pw)
        if c.cls == 'mfma' and pv & cr:
            n = max(n, 2)
        if c.cls in ('permlane', 'dpp') and pv & cr:
            n = max(n, 2)
        if c.cls == 'readlane' and pv & cr:
            n = max(n, 1)
        if p.cls == 'trans' and c.is_valu() and c.cls != 'trans' and pv & cr:
            n = max(n, 1)
        if p.cls == 'trans' and c.cls == 'trans' and pv & cr:
            n = max(n, 1)
        if p.cls == 'dot':
            if c.cls == 'dot' and c.op == p.op:
                ab = set(c.reads) - set(c.writes)
                if pv & ab:
                    n = max(n, 3)
            elif pv & (cr | cw):
                n = max(n, 3)
        ps = sca(pw)
        if ps:
            if c.is_valu() and ps & cr:
                n = max(n, 4 if c.cls == 'readlane' else 2)
            if c.cls == 'vmem' and ps & cr:
                n = max(n, 5)
            if c.cls in ('salu', 'smem') and ps & cr:
                n = max(n, 1)
        if 'exec' in pw:
            n = max(n, 5)
    if p.cls == 'mfma':
        D = set(p.writes)
        big = p.passes == 8
        if c.cls == 'mfma':
            if D & set(c.srcab):
                n = max(n, 12 if big else 8)
            if D & set(c.srcc):
                if not (list(c.srcc) == list(p.writes) and c.op == p.op):
                    n = max(n, 10 if big else 6)
            elif D & cw:
                n = max(n, 10 if big else 6)
        elif D & (cr | cw):
            n = max(n, 12 if big else 8)
        if c.is_valu() and set(p.srcc) & cw:
            n = max(n, 7 if big else 3)
    if p.cls == 'salu' and 'm0' in pw and c.is_dma:
        n = max(n, 1)
    if p.cls == 'vmem' and p.wide_data and set(p.wide_data) & cw:
        n = max(n, 2)
    return n


class State:
    def __init__(s):
        s.vm = {}
        s.lg = {}
        s.vmreg = {}
        s.lgreg = {}
        s.windows = [[]]
        s.smem = False


class Prog:
    def __init__(s):
        s.out = []
        s.st = State()
        s.ntok = 0
        s.nops = 0
        s.nop_log = []
        s.count = 0
        s.labels = 0
        s.maxv = 0
        s.maxa = -1
        s.maxs = 0

    def raw(s, text):
        s.out.append(text)

    def comment(s, text):
        s.out.append('; ' + text)

    def _advance(s, ins, states=1):
        for w in s.st.windows:
            for e in w:
                e[1] += states
            w[:] = [e for e in w if e[1] < 21]
            if ins is not None:
                w.append([ins, 0])

    def _emit_wait(s, vm=None, lg=None):
        parts = []
        if vm is not None:
            vm = min(vm, 63)
            parts.append('vmcnt(%d)' % vm)
            dead = [t for t, a in s.st.vm.items() if a >= vm]
            for t in dead:
                del s.st.vm[t]
            s.st.vmreg = {r: t for r, t in s.st.vmreg.items() if t in s.st.vm}
        if lg is not None:
            lg = min(lg, 15)
            parts.append('lgkmcnt(%d)' % lg)
            dead = [t for t, a in s.st.lg.items() if a >= lg]
            for t in dead:
                del s.st.lg[t]
            s.st.lgreg = {r: t for r, t in s.st.lgreg.items() if t in s.st.lg}
            if lg == 0:
                s.st.smem = False
        if parts:
            s.out.append('  s_waitcnt ' + ' '.join(parts))
            s.count += 1
            s._advance(None)

    def wait(s, vm=(), lg=()):
        if not isinstance(vm, (list, tuple, set)):
            vm = [vm]
        if not isinstance(lg, (list, tuple, set)):
            lg = [lg]
        a = [s.st.vm[t] for t in vm if t in s.st.vm]
        b = [s.st.lg[t] for t in lg if t in s.st.lg]
        nv = min(a) if a else None
        nl = min(b) if b else None
        if nl is not None and s.st.smem:
            nl = 0
        s._emit_wait(nv, nl)

    def wait_all(s, vm=False, lg=False):
        s._emit_wait(0 if vm else None, 0 if lg else None)

    def lg_drain(s):
        if s.st.lg or s.st.smem:
            s._emit_wait(None, 0)

    def __call__(s, text, tok=None):
        ins = Ins(text)
        for r in ins.reads + ins.writes:
            if r[0] == 'v' and r[1:].isdigit():
                s.maxv = max(s.maxv, int(r[1:]))
            if r[0] == 'a' and r[1:].isdigit():
                s.maxa = max(s.maxa, int(r[1:]))
            if r[0] == 's' and r[1:].isdigit():
                s.maxs = max(s.maxs, int(r[1:]))
        touched = set(ins.reads) | set(ins.writes)
        vt = [s.st.vmreg[r] for r in touched if r in s.st.vmreg]
        lt = [s.st.lgreg[r] for r in touched if r in s.st.lgreg]
        if vt or lt:
            s.wait(vm=vt, lg=lt)
        need = 0
        for w in s.st.windows:
            for p, d in w:
                need = max(need, need_states(p, ins) - d)
        if need > 0:
            s.nops += need
            s.nop_log.append((len(s.out), need, text))
            k = need
            while k > 0:
                m = min(k, 16)
                s.out.append('  s_nop %d' % (m - 1))
                s.count += 1
                k -= m
            s._advance(None, need)
        s.out.append('  ' + text)
        s.count += 1
        s._advance(ins)
        if ins.cls == 'vmem':
            if tok is None:
                s.ntok += 1
                tok = 'vm%d' % s.ntok
            for t in s.st.vm:
                s.st.vm[t] += 1
            s.st.vm[tok] = 0
            for r in ins.writes:
                s.st.vmreg[r] = tok
            return tok
        if ins.cls in ('ds', 'smem'):
            if tok is None:
                s.ntok += 1
                tok = 'lg%d' % s.ntok
            for t in s.st.lg:
                s.st.lg[t] += 1
            s.st.lg[tok] = 0
            if ins.cls == 'smem':
                s.st.smem = True
            for r in ins.writes:
                s.st.lgreg[r] = tok
            return tok
        return None

    def barrier(s):
        s.lg_drain()
        s('s_barrier')

    def label(s, name):
        s.out.append(name + ':')

    def newlabel(s, base='L'):
        s.labels += 1
        return '%s_%d' % (base, s.labels)

    def snapshot(s):
        return copy.deepcopy(s.st)

    def restore(s, st):
        s.st = copy.deepcopy(st)

    def merge(s, other):
        a, b = s.st, other
        for name in ('vm', 'lg'):
            da, db = getattr(a, name), getattr(b, name)
            for t, age in db.items():
                da[t] = min(da[t], age) if t in da else age
        for name in ('vmreg', 'lgreg'):
            da, db = getattr(a, name), getattr(b, name)
            dd = getattr(a, name[:2])
            for r, t in db.items():
                if r in da and da[r] != t:
                    if dd[t] < dd[da[r]]:
                        da[r] = t
                else:
                    da[r] = t
        a.windows += copy.deepcopy(b.windows)
        a.smem = a.smem or b.smem

    def run(s, items):
        for it in items:
            if isinstance(it, str):
                s(it)
            elif isinstance(it, tuple):
                s(it[0], tok=it[1])
            else:
                it()

    def text(s):
        return '\n'.join(s.out) + '\n'


def interleave(main, fill, per=None):
    out = []
    n, m = len(main), len(fill)
    j = 0
    for i, it in enumerate(main):
        out.append(it)
        tgt = (m * (i + 1)) // n if per is None else min(m, int(per * (i + 1)))
        while j < tgt:
            out.append(fill[j])
            j += 1
    out += fill[j:]
    return out


KNAME = 'recurrent_scan__linear_kernel_hedgehog__mixer_s_mlp__prompt_kernel'


def wrap(body, grid, block, lds, nv, na, ns, header=''):
    acc_off = ((nv + 3) // 4) * 4
    nfv = acc_off + na if na > 0 else nv
    o = header
    o += '; @launch grid=(%d,1,1) block=(%d,1,1) lds=%d\n' % (grid, block, lds)
    o += '.amdgcn_target "amdgcn-amd-amdhsa--gfx950"\n.text\n.globl %s\n.p2align 8\n.type %s,@function\n%s:\n' % (KNAME, KNAME, KNAME)
    o += body
    o += '.section .rodata,"a"\n.p2align 6\n.amdhsa_kernel %s\n' % KNAME
    o += '  .amdhsa_next_free_vgpr %d\n  .amdhsa_next_free_sgpr %d\n  .amdhsa_accum_offset %d\n' % (nfv, ns, acc_off)
    o += '  .amdhsa_group_segment_fixed_size 0\n  .amdhsa_kernarg_size 96\n  .amdhsa_user_sgpr_count 2\n'
    o += '  .amdhsa_user_sgpr_kernarg_segment_ptr 1\n  .amdhsa_system_sgpr_workgroup_id_x 1\n'
    o += '  .amdhsa_float_denorm_mode_32 3\n  .amdhsa_float_denorm_mode_16_64 3\n'
    o += '.end_amdhsa_kernel\n'
    return o
```

```python
import sys, os, struct
sys.path.insert(0, os.path.dirname(os.path.abspath(__file__)))
from dsl import *


def f2u(x):
    return struct.unpack('<I', struct.pack('<f', x))[0]


def hx(x):
    return '0x%08x' % (f2u(x))


MB = 1 << 20
WS_HS = 0
WS_X1 = 2 * MB
WS_O = 4 * MB
WS_H2 = 6 * MB
WS_KVP = 13 * MB
WS_SM = 17 * MB
WS_KVF = WS_SM
WS_ST1 = WS_SM + 0x10000
WS_F1 = WS_SM + 0x30000
WS_F2 = WS_F1 + 0x2000
WS_F3A = WS_F2 + 0x2000
WS_F3B = WS_F3A + 0x2000
WS_FO = WS_F3B + 0x2000
WS_FK = WS_FO + 0x2000
WS_FR = WS_FK + 0x1000
WS_EP = WS_FR + 0x1000
WS_DBG = WS_SM + 0x40000
WS_SIZE = WS_SM + 0x60000

NSLOT = 9
SLOT = 16384
M0_ = NSLOT * SLOT
M_PHI = M0_
M_SP = M_PHI + 4096
M_MEAN = M_SP + 1024
M_RSTD = M_MEAN + 256
M_CS = M_RSTD + 256
M_CS3 = M_CS + 512
M_CS3F = M_CS3 + 2048
LDS_BYTES = 160 * 1024
assert M_CS3F + 2048 <= LDS_BYTES

OOB = 0x80000000
LOG2E = 1.4426950408889634
GK0 = -2.0 * 0.7978845608028654 * LOG2E
GK1 = GK0 * 0.044715

S_X, S_QKV, S_PHI, S_WO, S_W1, S_W2, S_W3, S_W4, S_OUT, S_WS, S_WS4 = range(4, 48, 4)
srd = lambda b: 's[%d:%d]' % (b, b + 3)
sM, sC, sW, sWL, sXB, sW1B, sQB, sW3B, sW4B, sTAG, sONE, sOFF, sT0, sT1, sT2, sCNT, sI4R, sC14, sMW, sNW = ['s%d' % i for i in range(48, 68)]
sL2 = 's[68:69]'
sT3 = 's70'
sT4 = 's71'
sDL = 's72'
STAMP0 = 76

_v = [1]


def valloc(n, align=1):
    while _v[0] % align:
        _v[0] += 1
    b = _v[0]
    _v[0] += n
    return b


vL = valloc(1)
vL16 = valloc(1)
vDB = valloc(4)
vDC = valloc(4)
vDD = valloc(4)
vW32 = valloc(3)
vW4 = valloc(6)
vW16 = valloc(4)
vW16C = valloc(4)
vF0 = valloc(1)
vP = valloc(1)
vPA = valloc(1)
vXO = valloc(1)
vCQ = valloc(1)
vMEAN = valloc(2, 2)
vRSTD = valloc(2, 2)
vXT = valloc(8, 2)
vX1K = valloc(8, 4)
vST = valloc(8, 2)
vCSA = valloc(4, 2)
NFB = 6
vFB = valloc(4 * NFB, 4)
vACC = valloc(64, 4)
vAK = valloc(16, 4)
vAV = valloc(16, 4)
vT = valloc(64, 4)
vDX, vDA, vXR, vXS = vAV, vAV + 4, vAV + 8, vAV + 12
vSB = vAK
NV = _v[0]
assert NV <= 256, NV

v = lambda b, n=1: 'v%d' % b if n == 1 else 'v[%d:%d]' % (b, b + n - 1)
a = lambda b, n=1: 'a%d' % b if n == 1 else 'a[%d:%d]' % (b, b + n - 1)


class Chunk:
    def __init__(s, name, srd_, sbase, imm, vset, slot=None):
        s.name, s.srd, s.sbase, s.imm, s.vset, s.slot = name, srd_, sbase, imm, vset, slot
        s.tok = None
        s.issued = 0


class Gen:
    def __init__(g, stop=99, stamps=False, burst=9):
        g.p = Prog()
        g.stop = stop
        g.stamps = stamps
        g.nst = 0
        g.stnames = []
        g.burst = burst
        ch = []
        for j in range(4):
            ch.append(Chunk('X%d' % j, S_X, sXB, j * 256, vDX, slot=j))
            ch.append(Chunk('W1_%d' % j, S_W1, sW1B, j * 131072, vDA, slot=4 + j))
        for nm, off in (('K', 1024), ('V', 2048)):
            for j in range(4):
                ch.append(Chunk('%s%d' % (nm, j), S_QKV, sQB, off + j * 393216, vDB))
        for j in range(4):
            ch.append(Chunk('W2_%d' % j, S_W2, sW1B, j * 131072, vDC))
        for j in range(8):
            ch.append(Chunk('W3_%d' % j, S_W3, sW3B, (j >> 2) * 128 + (j & 3) * 458752, vDD))
        for j in range(4):
            ch.append(Chunk('Q%d' % j, S_QKV, sQB, j * 393216, vDB))
        for j in range(14):
            kb = 8 * j if j < 7 else 8 * (j - 7) + 2
            ch.append(Chunk('W4_%d' % j, S_W4, sW4B, kb * 32768, vDC))
        for j in range(4):
            ch.append(Chunk('WO_%d' % j, S_WO, sW1B, j * 131072, vDC))
        g.chunks = ch
        g.byname = {c.name: c for c in ch}
        g.nxt = 0
        g.free = list(range(NSLOT))
        g.pending_free = []

    def can_dma(g):
        if g.nxt >= len(g.chunks):
            return False
        c = g.chunks[g.nxt]
        if c.issued > 0:
            return True
        if c.slot is not None:
            return c.slot in g.free
        return len(g.free) > 0

    def dma(g, n=1):
        p = g.p
        for _ in range(n):
            if not g.can_dma():
                return
            c = g.chunks[g.nxt]
            if c.issued == 0:
                if c.slot is None:
                    c.slot = g.free[0]
                g.free.remove(c.slot)
                p('s_add_u32 m0, %s, %d' % (sWL, c.slot * SLOT))
                p('s_add_u32 %s, %s, %d' % (sOFF, c.sbase, c.imm))
            u = c.issued
            c.tok = p('buffer_load_dwordx4 %s, %s, %s offen offset:%d lds' % (v(c.vset + u), srd(c.srd), sOFF, u * 1024))
            c.issued += 1
            if c.issued == 4:
                g.nxt += 1

    def D(g, n=1):
        return lambda: g.dma(n)

    def finish_chunks(g, names):
        for nm in names:
            c = g.byname[nm]
            while c.issued < 4:
                assert g.can_dma(), ('no free slot for', nm, g.chunks[g.nxt].name)
                g.dma()

    def barrier(g):
        g.p.barrier()
        g.free += g.pending_free
        g.pending_free = []

    def acquire(g, names):
        g.finish_chunks(names)
        g.p.wait(vm=[g.byname[n].tok for n in names])
        g.barrier()

    def release(g, names):
        for n in names:
            g.pending_free.append(g.byname[n].slot)

    def lds(g, name, vbase, off):
        s = g.byname[name].slot
        return '%s offset:%d' % (v(vbase + (s >> 2)), (s & 3) * SLOT + off)

    def stamp(g, name):
        if g.stamps and g.nst < 13:
            g.p('s_memtime s[%d:%d]' % (STAMP0 + 2 * g.nst, STAMP0 + 2 * g.nst + 1))
            g.nst += 1
            g.stnames.append(name)

    def pipeline(g, steps, depth, fill=None):
        p = g.p
        n = len(steps)
        fill = fill or []
        j = 0
        for i in range(n + depth):
            if i < n:
                p.run(steps[i].get('pre', []))
                p.run(steps[i]['reads'])
            if i >= depth:
                p.run(steps[i - depth]['work'])
                tgt = (len(fill) * (i - depth + 1)) // n
                while j < tgt:
                    p.run([fill[j]])
                    j += 1

    def flag_store(g, soff):
        p = g.p
        p('v_mov_b32 %s, %s' % (v(vP), sTAG))
        p('buffer_store_dword %s, %s, %s, %s offen sc1' % (v(vP), v(vF0), srd(S_WS), soff))

    def publish(g, toks, base, idx_code, ws=S_WS):
        p = g.p

        def f():
            p.wait(vm=toks)
            idx_code()
            p('s_lshl_b32 %s, %s, 2' % (sT0, sT0))
            p('s_add_u32 %s, %s, %d' % (sT0, sT0, base))
            p('v_mov_b32 %s, %s' % (v(vT + 63), sTAG))
            p('buffer_store_dword %s, %s, %s, %s offen sc1' % (v(vT + 63), v(vF0), srd(ws), sT0))
        return f

    def poll_issue(g):
        g.p('buffer_load_dword %s, %s, %s, 0 offen sc1' % (v(vP), v(vPA), srd(S_WS)))

    def poll_check(g):
        p = g.p
        ok = p.newlabel('L_ok')
        lp = p.newlabel('L_spin')
        p('v_cmp_ne_u32 vcc, %s, %s' % (sTAG, v(vP)))
        p('s_nop 0')
        p('s_cbranch_vccz %s' % ok)
        st = p.snapshot()
        p('s_mov_b32 %s, 200000' % sCNT)
        p.label(lp)
        p('buffer_load_dword %s, %s, %s, 0 offen sc1' % (v(vP), v(vPA), srd(S_WS)))
        p.wait_all(vm=True)
        p('v_cmp_ne_u32 vcc, %s, %s' % (sTAG, v(vP)))
        p('s_nop 0')
        p('s_cbranch_vccz %s' % ok)
        p('s_sub_u32 %s, %s, 1' % (sCNT, sCNT))
        p('s_cbranch_scc0 %s' % lp)
        p.label(ok)
        p.merge(st)

    def bf16r(g, d, s_):
        p = g.p
        p('v_cvt_pk_bf16_f32 %s, %s, %s' % (d, s_, s_))
        p('v_and_b32 %s, 0xffff0000, %s' % (d, d))

    def ln_stats(g, vsum, vsq, vmean, vrstd, t, second=None):
        p = g.p
        p('v_mul_f32 %s, %s, %s' % (vmean, hx(1.0 / 512), vsum))
        p('v_mul_f32 %s, %s, %s' % (vsq, hx(1.0 / 512), vsq))
        p('v_fma_f32 %s, -%s, %s, %s' % (vsq, vmean, vmean, vsq))
        p('v_max_f32 %s, 0, %s' % (vsq, vsq))
        g.bf16r(vmean, vmean)
        g.bf16r(vsq, vsq)
        p('v_add_f32 %s, %s, %s' % (t, hx(1e-5), vsq))
        g.bf16r(t, t)
        p('v_sqrt_f32 %s, %s' % (vsum, t))
        g.bf16r(vsum, vsum)
        p('v_rcp_f32 %s, %s' % (vrstd, vsum))

    def gelu_items(g, acc, n, cs, vnm, vk0, vk1, vS, out, tmp, pk=True):
        it = []
        bc = lambda r: 'v[%d:%d]' % (r, r + 1)
        for i in range(0, n, 2):
            A = 'v[%d:%d]' % (acc + i, acc + i + 1)
            T = tmp + (i & 2)
            TT = 'v[%d:%d]' % (T, T + 1)
            if pk:
                it.append('v_pk_fma_f32 %s, v[%d:%d], %s, %s op_sel_hi:[1,0,1]' % (A, cs + i, cs + i + 1, bc(vnm), A))
                it.append('v_pk_mul_f32 %s, %s, %s' % (TT, A, A))
                it.append('v_pk_fma_f32 %s, %s, %s, %s op_sel_hi:[1,0,0]' % (TT, TT, bc(vk1), bc(vk0)))
                it.append('v_pk_mul_f32 %s, %s, %s' % (TT, TT, A))
                it.append('v_exp_f32 v%d, v%d' % (T, T))
                it.append('v_exp_f32 v%d, v%d' % (T + 1, T + 1))
                it.append('v_pk_fma_f32 %s, %s, %s, %s op_sel_hi:[1,0,0]' % (TT, TT, bc(vS), bc(vS)))
                it.append('v_rcp_f32 v%d, v%d' % (T, T))
                it.append('v_rcp_f32 v%d, v%d' % (T + 1, T + 1))
                it.append('v_pk_mul_f32 %s, %s, %s' % (TT, TT, A))
            else:
                for e in (0, 1):
                    it.append('v_fmac_f32 v%d, v%d, v%d' % (acc + i + e, cs + i + e, vnm))
                for e in (0, 1):
                    it.append('v_mul_f32 v%d, v%d, v%d' % (T + e, acc + i + e, acc + i + e))
                for e in (0, 1):
                    it.append('v_fma_f32 v%d, v%d, v%d, v%d' % (T + e, T + e, vk1, vk0))
                for e in (0, 1):
                    it.append('v_mul_f32 v%d, v%d, v%d' % (T + e, T + e, acc + i + e))
                for e in (0, 1):
                    it.append('v_exp_f32 v%d, v%d' % (T + e, T + e))
                for e in (0, 1):
                    it.append('v_fma_f32 v%d, v%d, v%d, v%d' % (T + e, T + e, vS, vS))
                for e in (0, 1):
                    it.append('v_rcp_f32 v%d, v%d' % (T + e, T + e))
                for e in (0, 1):
                    it.append('v_mul_f32 v%d, v%d, v%d' % (T + e, T + e, acc + i + e))
            it.append('v_cvt_pk_bf16_f32 v%d, v%d, v%d' % (out + i // 2, T, T + 1))
        per = len(it) // (n // 2)
        res = []
        for i in range(0, n // 2, 2):
            x, y = it[i * per:(i + 1) * per], it[(i + 1) * per:(i + 2) * per]
            for q in range(per):
                res.append(x[q])
                res.append(y[q])
        return res

    def setup(g):
        p = g.p
        p('s_cmp_ge_u32 s2, 256')
        p('s_cbranch_scc1 L_end')
        for b, off in ((S_X, 0), (S_W1, 40), (S_QKV, 8), (S_PHI, 16), (S_WO, 24), (S_W2, 48), (S_W3, 56), (S_W4, 64), (S_OUT, 72), (S_WS, 88), (S_WS4, 88)):
            p('s_load_dwordx2 s[%d:%d], s[0:1], %d' % (b, b + 1, off))
        p('v_lshrrev_b32 %s, 6, v0' % v(vT))
        p('v_and_b32 %s, 63, v0' % v(vL))
        p('v_readfirstlane_b32 %s, %s' % (sW, v(vT)))
        p('s_and_b32 %s, s2, 7' % sT0)
        p('s_lshr_b32 %s, s2, 3' % sT1)
        p('s_lshr_b32 %s, %s, 1' % (sT2, sT0))
        p('s_and_b32 %s, %s, 1' % (sT0, sT0))
        p('s_lshl_b32 %s, %s, 3' % (sM, sT2))
        p('s_lshr_b32 %s, %s, 2' % (sT3, sT1))
        p('s_add_u32 %s, %s, %s' % (sM, sM, sT3))
        p('s_lshl_b32 %s, %s, 2' % (sC, sT0))
        p('s_and_b32 %s, %s, 3' % (sT3, sT1))
        p('s_add_u32 %s, %s, %s' % (sC, sC, sT3))
        p('s_lshl_b32 %s, %s, 2' % (sI4R, sT2))
        p('s_lshr_b32 %s, %s, 3' % (sT3, sT1))
        p('s_add_u32 %s, %s, %s' % (sI4R, sI4R, sT3))
        p('s_lshl_b32 %s, %s, 2' % (sI4R, sI4R))
        p('s_add_u32 %s, %s, %s' % (sI4R, sI4R, sW))
        p('s_mul_i32 %s, %s, 7' % (sC14, sT0))
        p('s_and_b32 %s, %s, 7' % (sT4, sT1))
        p('s_add_u32 %s, %s, %s' % (sC14, sC14, sT4))
        p('s_lshr_b32 %s, %s, 1' % (sMW, sW))
        p('s_and_b32 %s, %s, 1' % (sNW, sW))
        p('s_lshl_b32 %s, %s, 12' % (sWL, sW))
        p('s_lshl_b32 %s, %s, 16' % (sXB, sM))
        p('s_lshl_b32 %s, %s, 15' % (sT0, sNW))
        p('s_add_u32 %s, %s, %s' % (sXB, sXB, sT0))
        p('s_lshl_b32 %s, %s, 7' % (sT0, sMW))
        p('s_add_u32 %s, %s, %s' % (sXB, sXB, sT0))
        p('s_lshl_b32 %s, %s, 7' % (sT1, sC))
        p('s_lshl_b32 %s, %s, 15' % (sW1B, sW))
        p('s_add_u32 %s, %s, %s' % (sW1B, sW1B, sT1))
        p('s_mul_i32 %s, %s, %d' % (sQB, sW, 32 * 3072))
        p('s_add_u32 %s, %s, %s' % (sQB, sQB, sT1))
        p('s_mul_i32 %s, %s, %d' % (sW3B, sW, 32 * 3584))
        p('s_lshl_b32 %s, %s, 8' % (sT0, sC14))
        p('s_add_u32 %s, %s, %s' % (sW3B, sW3B, sT0))
        p('s_lshl_b32 %s, %s, 2' % (sW4B, sMW))
        p('s_add_u32 %s, %s, %s' % (sW4B, sW4B, sNW))
        p('s_lshl_b32 %s, %s, 15' % (sW4B, sW4B))
        p('s_add_u32 %s, %s, %s' % (sW4B, sW4B, sT1))
        for b, n in ((S_X, 2048 * 1024), (S_W1, 512 * 1024), (S_QKV, 512 * 3072), (S_PHI, 32 * 512), (S_WO, 512 * 1024), (S_W2, 512 * 1024),
                     (S_W4, 1792 * 1024), (S_OUT, 2048 * 1024), (S_WS, WS_SIZE)):
            p('s_mov_b32 s%d, %d' % (b + 2, n))
            p('s_mov_b32 s%d, 0x20000' % (b + 3))
        p('s_cmp_eq_u32 %s, 7' % sT4)
        p('s_cselect_b32 s%d, 0, %d' % (S_W3 + 2, 512 * 3584))
        p('s_cselect_b32 s%d, 0, %d' % (S_WS4 + 2, WS_SIZE))
        p('s_mov_b32 s%d, 0x20000' % (S_W3 + 3))
        p('s_mov_b32 s%d, 0x20000' % (S_WS4 + 3))
        r8, p16, t0, t1 = v(vT), v(vT + 1), v(vT + 2), v(vT + 3)
        l = v(vL)
        p('v_lshrrev_b32 %s, 3, %s' % (r8, l))
        p('v_and_b32 %s, 7, %s' % (p16, l))
        p('v_lshrrev_b32 %s, 4, %s' % (t0, l))
        p('v_xor_b32 %s, %s, %s' % (t1, p16, t0))
        p('v_lshlrev_b32 %s, 4, %s' % (t1, t1))
        p('v_lshl_add_u32 %s, %s, 10, %s' % (v(vDX), r8, t1))
        p('v_xor_b32 %s, 64, %s' % (v(vDX + 1), v(vDX)))
        p('v_add_u32 %s, %d, %s' % (v(vDX + 1), 8192 - 1024, v(vDX + 1)))
        p('v_add_u32 %s, %d, %s' % (v(vDX + 2), 2 * (8192 - 1024), v(vDX)))
        p('v_add_u32 %s, %d, %s' % (v(vDX + 3), 2 * (8192 - 1024), v(vDX + 1)))
        p('v_and_b32 %s, 1, %s' % (t1, t0))
        p('v_lshlrev_b32 %s, 2, %s' % (t1, t1))
        p('v_xor_b32 %s, %s, %s' % (t1, p16, t1))
        p('v_lshlrev_b32 %s, 4, %s' % (t1, t1))
        p('v_lshl_add_u32 %s, %s, 10, %s' % (v(vDA), r8, t1))
        for u in range(1, 4):
            p('v_add_u32 %s, %d, %s' % (v(vDA + u), u * (8192 - 1024), v(vDA)))
        p.wait_all(lg=True)
        g.stamp('start')
        g.dma(8)
        p('v_mul_u32_u24 %s, 3072, %s' % (v(vDB), r8))
        p('v_add_u32 %s, %s, %s' % (v(vDB), v(vDB), t1))
        p('v_mul_u32_u24 %s, 3584, %s' % (v(vDD), r8))
        p('v_add_u32 %s, %s, %s' % (v(vDD), v(vDD), t1))
        p('v_lshlrev_b32 %s, 1, %s' % (t1, t0))
        p('v_xor_b32 %s, %s, %s' % (t1, p16, t1))
        p('v_lshlrev_b32 %s, 4, %s' % (t1, t1))
        p('v_lshl_add_u32 %s, %s, 10, %s' % (v(vDC), r8, t1))
        g.dma(2)
        for u in range(1, 4):
            p('v_add_u32 %s, %d, %s' % (v(vDB + u), u * (8 * 3072 - 1024), v(vDB)))
            p('v_add_u32 %s, %d, %s' % (v(vDD + u), u * (8 * 3584 - 1024), v(vDD)))
            p('v_add_u32 %s, %d, %s' % (v(vDC + u), u * (8192 - 1024), v(vDC)))
        g.dma(2)
        p('v_lshlrev_b32 %s, 4, %s' % (v(vL16), l))
        p('s_mov_b32 %s, 0x3f803f80' % sONE)
        p('s_mov_b32 s68, %s' % hx(LOG2E))
        p('s_mov_b32 s69, %s' % hx(LOG2E))
        p('v_cmp_eq_u32 vcc, 0, %s' % l)
        p('v_mov_b32 %s, 0x%x' % (v(vF0), OOB))
        p('v_cndmask_b32 %s, %s, 0, vcc' % (v(vF0), v(vF0)))
        g.dma(2)
        p('v_mov_b32 %s, %d' % (v(vPA), WS_EP))
        g.poll_issue()
        tok, h, r, cc, t2 = v(vT + 4), v(vT + 5), v(vT + 6), v(vT + 7), v(vT + 8)
        p('v_and_b32 %s, 31, %s' % (tok, l))
        p('v_lshrrev_b32 %s, 5, %s' % (h, l))
        p('v_bfe_u32 %s, %s, 2, 2' % (r, l))
        p('v_and_b32 %s, 3, %s' % (cc, l))
        p('v_lshlrev_b32 %s, 4, %s' % (v(vCQ), h))
        g.dma(2)
        p('v_bfe_u32 %s, %s, 1, 3' % (t1, tok))
        p('v_xor_b32 %s, %s, %s' % (t1, t1, h))
        p('v_lshlrev_b32 %s, 4, %s' % (t1, t1))
        p('v_lshl_add_u32 %s, %s, 7, %s' % (t1, tok, t1))
        p('s_lshl_b32 %s, %s, 12' % (sT0, sMW))
        p('v_add_u32 %s, %s, %s' % (v(vXR), sT0, t1))
        for kk in range(1, 4):
            p('v_xor_b32 %s, %d, %s' % (v(vXR + kk), kk << 5, v(vXR)))
        p('s_lshl_b32 %s, %s, 5' % (sT0, sNW))
        p('v_xor_b32 %s, %s, %s' % (v(vXS), sT0, v(vXR)))
        p('v_xor_b32 %s, 64, %s' % (v(vXS + 1), v(vXS)))
        g.dma(2)
        p('v_bfe_u32 %s, %s, 4, 1' % (t1, l))
        p('v_lshlrev_b32 %s, 1, %s' % (t1, t1))
        p('v_lshrrev_b32 %s, 1, %s' % (t2, cc))
        p('v_or_b32 %s, %s, %s' % (t1, t1, t2))
        p('v_lshrrev_b32 %s, 1, %s' % (t2, r))
        p('v_lshlrev_b32 %s, 2, %s' % (t2, t2))
        p('v_or_b32 %s, %s, %s' % (t1, t1, t2))
        p('v_lshlrev_b32 %s, 4, %s' % (t1, t1))
        p('v_and_b32 %s, 1, %s' % (t2, cc))
        p('v_lshl_add_u32 %s, %s, 3, %s' % (t1, t2, t1))
        g.dma(2)
        p('v_lshl_add_u32 %s, %s, 3, %s' % (t2, h, r))
        p('v_lshl_add_u32 %s, %s, 7, %s' % (v(vW32), t2, t1))
        p('s_lshl_b32 %s, %s, 6' % (sT0, sNW))
        p('v_xor_b32 %s, %s, %s' % (v(vW32), sT0, v(vW32)))
        p('v_add_u32 %s, 0x10000, %s' % (v(vW32 + 1), v(vW32)))
        p('v_add_u32 %s, 0x20000, %s' % (v(vW32 + 2), v(vW32)))
        p('v_lshl_add_u32 %s, %s, 2, %s' % (t2, h, r))
        p('v_lshl_add_u32 %s, %s, 7, %s' % (v(vW4), t2, t1))
        p('v_xor_b32 %s, 64, %s' % (v(vW4 + 3), v(vW4)))
        for tt in range(2):
            p('v_add_u32 %s, 0x10000, %s' % (v(vW4 + 3 * tt + 1), v(vW4 + 3 * tt)))
            p('v_add_u32 %s, 0x20000, %s' % (v(vW4 + 3 * tt + 2), v(vW4 + 3 * tt)))
        g.dma(2)
        g1 = v(vT + 9)
        p('v_bfe_u32 %s, %s, 4, 1' % (g1, l))
        p('v_lshlrev_b32 %s, 4, %s' % (t2, h))
        p('v_lshl_add_u32 %s, %s, 2, %s' % (t2, g1, t2))
        p('v_add_u32 %s, %s, %s' % (t2, t2, r))
        p('v_lshrrev_b32 %s, 1, %s' % (t1, r))
        p('v_lshl_add_u32 %s, %s, 1, %s' % (t1, g1, t1))
        p('v_lshlrev_b32 %s, 1, %s' % (t1, t1))
        p('v_lshrrev_b32 %s, 1, %s' % (g1, cc))
        p('v_or_b32 %s, %s, %s' % (t1, t1, g1))
        p('v_lshlrev_b32 %s, 4, %s' % (t1, t1))
        p('v_and_b32 %s, 1, %s' % (g1, cc))
        p('v_lshl_add_u32 %s, %s, 3, %s' % (t1, g1, t1))
        p('v_lshl_add_u32 %s, %s, 7, %s' % (v(vW16), t2, t1))
        g.dma(2)
        for t in range(1, 4):
            p('v_xor_b32 %s, %d, %s' % (v(vW16 + t), t << 5, v(vW16)))
        g.dma(2)
        p('v_and_b32 %s, 15, %s' % (t1, l))
        p('v_lshlrev_b32 %s, 10, %s' % (t1, t1))
        p('v_lshl_add_u32 %s, %s, 3, %s' % (t1, t0, t1))
        p('s_lshl_b32 %s, %s, 16' % (sT0, sM))
        p('s_lshl_b32 %s, %s, 14' % (sT1, sW))
        p('s_add_u32 %s, %s, %s' % (sT0, sT0, sT1))
        p('s_lshl_b32 %s, %s, 7' % (sT1, sC))
        p('s_add_u32 %s, %s, %s' % (sT0, sT0, sT1))
        p('v_add_u32 %s, %s, %s' % (v(vXO), sT0, t1))
        p('s_lshr_b32 %s, %s, 2' % (sT0, sC))
        p('s_add_u32 %s, %s, 1' % (sDL, sT0))
        p('s_sub_u32 %s, 0, %s' % (sT0, sDL))
        p('s_bitcmp1_b32 %s, 1' % sC)
        p('s_cselect_b32 %s, %s, %s' % (sDL, sT0, sDL))
        for i in range(4):
            p('v_mov_b32 %s, 0' % v(vST + i))
            p('v_mov_b32 %s, %s' % (v(vT + 60 + i), sONE))
        while g.nxt < 8:
            g.dma(1)
        assert g.chunks[g.nxt].issued == 0
        p('v_cmp_gt_u32 vcc, 32, %s' % l)
        p('v_mov_b32 %s, 0x%x' % (t1, OOB))
        p('v_cndmask_b32 %s, %s, %s, vcc' % (t1, t1, v(vL16)))
        p('s_lshl_b32 %s, %s, 2' % (sT0, sC))
        p('s_add_u32 %s, %s, %s' % (sT0, sT0, sW))
        p('s_lshl_b32 %s, %s, 9' % (sT0, sT0))
        p('s_lshl_b32 %s, %s, 10' % (sT1, sW))
        p('s_add_u32 m0, %s, %d' % (sT1, M_PHI))
        p('s_nop 0')
        g.tok_phi = p('buffer_load_dwordx4 %s, %s, %s offen lds' % (t1, srd(S_PHI), sT0))
        for t in range(4):
            p('buffer_load_dwordx2 %s, %s, %s, 0 offen offset:%d' % (v(vXT + 2 * t, 2), v(vXO), srd(S_X), 32 * t))
        g.dma(4 * (g.burst - 8))

    def g2(g):
        p = g.p
        ones = v(vT + 60, 4)
        accH, accC = vACC, vACC + 16
        steps = []
        for ks in range(32):
            j, k8 = ks >> 3, ks & 7
            fb = vFB + 4 * (ks % NFB)
            st = dict(pre=[], reads=[], work=[])
            if k8 == 0:
                def acq(j=j):
                    if j > 0:
                        g.release(['X%d' % (j - 1), 'W1_%d' % (j - 1)])
                    g.acquire(['X%d' % j, 'W1_%d' % j])
                    if j == 0:
                        g.stamp('first data')
                st['pre'].append(acq)
            xo = j * SLOT + (k8 >> 2) * 8192
            st['reads'].append('ds_read_b128 %s, %s offset:%d' % (a(4 * ks, 4), v(vXR + (k8 & 3)), xo))
            for q in range(2):
                st['reads'].append(lambda fb=fb, q=q, j=j, k8=k8: p('ds_read_b64_tr_b16 %s, %s' % (v(fb + 2 * q, 2), g.lds('W1_%d' % j, vW32, k8 * 2048 + q * 512))))
            c0 = '0' if ks == 0 else None
            st['work'].append('v_mfma_f32_32x32x16_bf16 %s, %s, %s, %s' % (v(accH, 16), v(fb, 4), a(4 * ks, 4), c0 or v(accH, 16)))
            if k8 & 1 == 0:
                sb = vSB + 4 * ((ks >> 1) & 1)
                st['reads'].append('ds_read_b128 %s, %s offset:%d' % (v(sb, 4), v(vXS + ((k8 >> 1) & 1)), xo))
                for i in range(4):
                    st['work'].append('v_dot2c_f32_bf16 %s, %s, %s' % (v(vST + (i & 1)), sONE, v(sb + i)))
                    st['work'].append('v_dot2c_f32_bf16 %s, %s, %s' % (v(vST + 2 + (i & 1)), v(sb + i), v(sb + i)))
            st['work'].insert(5 if k8 & 1 == 0 else 1, 'v_mfma_f32_32x32x16_bf16 %s, %s, %s, %s' % (v(accC, 16), v(fb, 4), ones, c0 or v(accC, 16)))
            st['work'].append(g.D(1))
            steps.append(st)
        g.pipeline(steps, 2)
        g.stamp('g2 mfma done')
        p('v_readfirstlane_b32 %s, %s' % (sTAG, v(vP)))
        p('s_mul_i32 %s, %s, 1664525' % (sTAG, sTAG))
        p('s_add_u32 %s, %s, 1013904223' % (sTAG, sTAG))
        s0, s1, q0, q1 = [v(vST + i) for i in range(4)]
        p('v_add_f32 %s, %s, %s' % (s0, s0, s1))
        p('v_add_f32 %s, %s, %s' % (q0, q0, q1))
        p('v_permlane32_swap_b32 %s, %s' % (s0, q0))
        p('v_add_f32 %s, %s, %s' % (s0, s0, q0))
        t1, t2 = v(vT), v(vT + 1)
        p('v_and_b32 %s, 31, %s' % (t1, v(vL)))
        p('v_lshlrev_b32 %s, 2, %s' % (t1, t1))
        p('s_lshl_b32 %s, %s, 7' % (sT0, sMW))
        p('v_add_u32 %s, %s, %s' % (t1, sT0, t1))
        p('v_lshl_add_u32 %s, %s, 4, %s' % (t2, v(vCQ), t1))
        p('s_lshl_b32 %s, %s, 9' % (sT0, sNW))
        p('v_add_u32 %s, %s, %s' % (t2, sT0, t2))
        p('v_add_u32 %s, %d, %s' % (t1, M_SP, t1))
        p('v_add_u32 %s, %d, %s' % (t2, M_SP, t2))
        p('ds_write_b32 %s, %s' % (t2, s0))
        g.release(['X3', 'W1_3'])
        g.acquire(['K0'])
        p('ds_read2st64_b32 %s, %s offset0:0 offset1:2' % (v(vST, 2), t1))
        p('ds_read2st64_b32 %s, %s offset0:1 offset1:3' % (v(vST + 2, 2), t1))
        tp, ad, zad = v(vT + 2), v(vT + 3), v(vT + 4)
        p('s_lshl_b32 %s, %s, 6' % (sT0, sM))
        p('s_lshl_b32 %s, %s, 5' % (sT1, sMW))
        p('s_add_u32 %s, %s, %s' % (sT0, sT0, sT1))
        p('v_and_b32 %s, 31, %s' % (tp, v(vL)))
        p('v_add_u32 %s, %s, %s' % (zad, sT0, tp))
        p('v_add_u32 %s, %s, %s' % (tp, sDL, zad))

        def hs_addr(dst, tok, tmp):
            p('v_lshrrev_b32 %s, 4, %s' % (tmp, tok))
            p('v_and_b32 %s, 15, %s' % (dst, tok))
            p('v_add_u32 %s, %s, %s' % (dst, dst, v(vCQ)))
            p('v_lshlrev_b32 %s, 4, %s' % (dst, dst))
            p('v_lshl_add_u32 %s, %s, 14, %s' % (dst, tmp, dst))
        hs_addr(ad, tp, v(vT + 5))
        g.dma(1)
        p('v_cmp_gt_u32 vcc, 2048, %s' % tp)
        p('v_mov_b32 %s, 0x%x' % (v(vT + 6), OOB))
        p('v_cndmask_b32 %s, %s, %s, vcc' % (ad, v(vT + 6), ad))
        p('s_lshl_b32 %s, %s, 1' % (sT1, sC))
        p('s_add_u32 %s, %s, %s' % (sT1, sT1, sNW))
        p('s_lshl_b32 %s, %s, 10' % (sT2, sT1))
        p('v_add_f32 %s, %s, %s' % (s0, s0, s1))
        p('v_add_f32 %s, %s, %s' % (q0, q0, q1))
        g.ln_stats(s0, q0, v(vMEAN), v(vRSTD), s1)
        g.dma(1)
        p('ds_write_b32 %s, %s offset:%d' % (t1, v(vMEAN), M_MEAN - M_SP))
        p('ds_write_b32 %s, %s offset:%d' % (t1, v(vRSTD), M_RSTD - M_SP))
        k0, k1, S, nm = vT + 8, vT + 10, vT + 12, vT + 14
        p('v_mul_f32 %s, %s, %s' % (q0, q0, v(vRSTD)))
        p('v_mul_f32 %s, %s, %s' % (q0, q0, v(vRSTD)))
        g.bf16r(q0, q0)
        p('v_add_f32 %s, %s, %s' % (q0, hx(1e-5), q0))
        g.bf16r(q0, q0)
        p('v_sqrt_f32 %s, %s' % (q0, q0))
        g.bf16r(q0, q0)
        p('v_mul_f32 %s, %s, %s' % (v(S), s0, q0))
        p('v_rcp_f32 %s, %s' % (q1, v(S)))
        p('v_sub_f32 %s, 0, %s' % (v(vMEAN), v(vMEAN)))
        p('v_mul_f32 %s, %s, %s' % (v(k0), hx(GK0), q1))
        p('v_mul_f32 %s, %s, %s' % (v(k1), q1, q1))
        p('v_mul_f32 %s, %s, %s' % (v(k1), v(k1), q1))
        p('v_mul_f32 %s, %s, %s' % (v(k1), hx(GK1), v(k1)))
        out = vT + 16
        items = g.gelu_items(accH, 16, accC, vMEAN, k0, k1, S, out, vT + 24)
        half = len(items) // 2
        p.run(interleave(items[:half], [g.D(1)] * 3))
        toks = [p('buffer_store_dwordx4 %s, %s, %s, %s offen sc1' % (v(out, 4), ad, srd(S_WS), sT2))]
        p.run(interleave(items[half:], [g.D(1)] * 3))
        toks.append(p('buffer_store_dwordx4 %s, %s, %s, %s offen offset:512 sc1' % (v(out + 4, 4), ad, srd(S_WS), sT2)))
        skip = p.newlabel('L_nz')
        p('s_add_u32 %s, %s, 1' % (sT0, sM))
        p('s_and_b32 %s, %s, 30' % (sT0, sT0))
        p('s_cbranch_scc1 %s' % skip)
        st = p.snapshot()
        p('v_subrev_u32 %s, %s, %s' % (tp, sDL, zad))
        hs_addr(ad, zad, v(vT + 5))
        p('v_cmp_lt_u32 vcc, 2047, %s' % tp)
        p('v_cndmask_b32 %s, %s, %s, vcc' % (ad, v(vT + 6), ad))
        for i in range(4):
            p('v_mov_b32 %s, 0' % v(vT + 24 + i))
        toks.append(p('buffer_store_dwordx4 %s, %s, %s, %s offen sc1' % (v(vT + 24, 4), ad, srd(S_WS), sT2)))
        toks.append(p('buffer_store_dwordx4 %s, %s, %s, %s offen offset:512 sc1' % (v(vT + 24, 4), ad, srd(S_WS), sT2)))
        p.label(skip)
        p.merge(st)
        g.stamp('h stored')

        def idx():
            p('s_lshl_b32 %s, %s, 1' % (sT0, sM))
            p('s_add_u32 %s, %s, %s' % (sT0, sT0, sMW))
            p('s_lshl_b32 %s, %s, 4' % (sT0, sT0))
            p('s_add_u32 %s, %s, %s' % (sT0, sT0, sC))
            p('s_lshl_b32 %s, %s, 1' % (sT0, sT0))
            p('s_add_u32 %s, %s, %s' % (sT0, sT0, sNW))
        return g.publish(toks, WS_F1, idx)

    def qkv_tile(g, nm, acc, transposed, cs, extra=None, first_acquired=False, last_release=True, prev=None):
        p = g.p
        extra = extra or {}
        p('v_mov_b32 %s, 0' % v(cs))
        p('v_mov_b32 %s, 0' % v(cs + 1))
        steps = []
        for ks in range(32):
            j, k8 = ks >> 3, ks & 7
            fb = vFB + 4 * (ks % NFB)
            st = dict(pre=[], reads=[], work=[])
            if k8 == 0 and not (j == 0 and first_acquired):
                def acq(j=j):
                    if j > 0:
                        g.release(['%s%d' % (nm, j - 1)])
                    elif prev:
                        g.release(prev)
                    g.acquire(['%s%d' % (nm, j)])
                st['pre'].append(acq)
            for q in range(2):
                st['reads'].append(lambda fb=fb, q=q, j=j, k8=k8: p('ds_read_b64_tr_b16 %s, %s' % (v(fb + 2 * q, 2), g.lds('%s%d' % (nm, j), vW32, k8 * 2048 + q * 512))))
            A, B = (v(fb, 4), a(4 * ks, 4)) if transposed else (a(4 * ks, 4), v(fb, 4))
            st['work'].append('v_mfma_f32_32x32x16_bf16 %s, %s, %s, %s' % (v(acc, 16), A, B, '0' if ks == 0 else v(acc, 16)))
            for i in range(4):
                st['work'].append('v_dot2c_f32_bf16 %s, %s, %s' % (v(cs + (i & 1)), sONE, v(fb + i)))
            if ks & 1:
                st['work'].append(g.D(1))
            if ks in extra:
                st['work'] += extra[ks]
            steps.append(st)
        g.pipeline(steps, 4)
        p('v_add_f32 %s, %s, %s' % (v(cs), v(cs), v(cs + 1)))
        p('v_mov_b32 %s, %s' % (v(cs + 1), v(cs)))
        p('v_permlane32_swap_b32 %s, %s' % (v(cs), v(cs + 1)))
        p('v_add_f32 %s, %s, %s' % (v(cs), v(cs), v(cs + 1)))

    def cs_bounce(g, cs, dst, tmp):
        p = g.p
        p('v_and_b32 %s, 31, %s' % (v(tmp), v(vL)))
        p('v_lshlrev_b32 %s, 2, %s' % (v(tmp), v(tmp)))
        p('s_lshl_b32 %s, %s, 7' % (sT0, sW))
        p('s_add_u32 %s, %s, %d' % (sT0, sT0, M_CS))
        p('v_add_u32 %s, %s, %s' % (v(tmp), sT0, v(tmp)))
        p('ds_write_b32 %s, %s' % (v(tmp), v(cs)))
        p('v_add_u32 %s, %s, %s' % (v(tmp), sT0, v(vCQ)))
        for q in range(4):
            p('ds_read_b128 %s, %s offset:%d' % (v(dst + 4 * q, 4), v(tmp), 32 * q))

    def gemm16(g, chunks, acc, afrag, prev=None, first=True, pre_step=None, depth=5, fill=None, first_acquired=False):
        p = g.p
        steps = []
        n = 0
        for ci, nm in enumerate(chunks):
            for kb in range(4):
                for t in range(4):
                    fb = vFB + 4 * (n % NFB)
                    st = dict(pre=[], reads=[], work=[])
                    if kb == 0 and t == 0 and not (ci == 0 and first_acquired):
                        def acq(ci=ci, nm=nm):
                            if ci > 0:
                                g.release([chunks[ci - 1]])
                            elif prev:
                                g.release(prev)
                            g.finish_chunks([nm])
                            for tt in range(4):
                                p('v_add_u32 %s, %d, %s' % (v(vW16C + tt), g.byname[nm].slot * SLOT, v(vW16 + tt)))
                            g.acquire([nm])
                        st['pre'].append(acq)
                    for q in range(2):
                        st['reads'].append('ds_read_b64_tr_b16 %s, %s offset:%d' % (v(fb + 2 * q, 2), v(vW16C + t), kb * 4096 + q * 1024))
                    c0 = '0' if (first and ci == 0 and kb == 0) else v(acc + 4 * t, 4)
                    st['work'].append('v_mfma_f32_16x16x32_bf16 %s, %s, %s, %s' % (v(acc + 4 * t, 4), v(fb, 4), a(afrag(ci, kb), 4), c0))
                    if pre_step:
                        st['work'] += pre_step(ci, kb, t)
                    steps.append(st)
                    n += 1
        g.pipeline(steps, depth, fill)

    def g3_poll_addr(g):
        p = g.p
        p('s_lshl_b32 %s, %s, 6' % (sT0, sM))
        p('s_lshl_b32 %s, %s, 4' % (sT1, sW))
        p('s_add_u32 %s, %s, %s' % (sT0, sT0, sT1))
        p('s_max_u32 %s, %s, 2' % (sT1, sT0))
        p('s_sub_u32 %s, %s, 2' % (sT1, sT1))
        p('s_lshr_b32 %s, %s, 5' % (sT1, sT1))
        p('s_add_u32 %s, %s, 17' % (sT0, sT0))
        p('s_lshr_b32 %s, %s, 5' % (sT0, sT0))
        p('s_min_u32 %s, %s, 63' % (sT0, sT0))
        p('v_mov_b32 %s, %s' % (v(vPA), sT1))
        p('v_mov_b32 %s, %s' % (v(vP), sT0))
        p('v_and_b32 %s, 16, %s' % (v(vT + 62), v(vL)))
        p('v_cmp_eq_u32 vcc, 0, %s' % v(vT + 62))
        p('v_cndmask_b32 %s, %s, %s, vcc' % (v(vPA), v(vP), v(vPA)))
        p('v_and_b32 %s, 15, %s' % (v(vT + 62), v(vL)))
        p('v_lshl_add_u32 %s, %s, 5, %s' % (v(vPA), v(vPA), v(vT + 62)))
        p('v_lshlrev_b32 %s, 2, %s' % (v(vPA), v(vPA)))
        p('v_add_u32 %s, %d, %s' % (v(vPA), WS_F1, v(vPA)))

    def line_poll_addr(g, base, srow, maxi=15):
        p = g.p
        p('v_and_b32 %s, 15, %s' % (v(vPA), v(vL)))
        if maxi < 15:
            p('v_min_u32 %s, %d, %s' % (v(vPA), maxi, v(vPA)))
        p('v_lshlrev_b32 %s, 2, %s' % (v(vPA), v(vPA)))
        p('s_lshl_b32 %s, %s, 7' % (sT0, srow))
        p('s_add_u32 %s, %s, %d' % (sT0, sT0, base))
        p('v_add_u32 %s, %s, %s' % (v(vPA), sT0, v(vPA)))

    def g3(g):
        p = g.p
        g.poll_check()
        g.stamp('h seen')
        acc = vACC
        p('s_lshl_b32 %s, %s, 2' % (sT3, sM))
        p('s_add_u32 %s, %s, %s' % (sT3, sT3, sW))
        p('s_lshl_b32 %s, %s, 14' % (sT4, sT3))
        loads = []
        for kb in range(16):
            if kb & 3 == 0 and kb:
                loads.append('s_add_u32 %s, %s, 4096' % (sT4, sT4))
            loads.append('buffer_load_dwordx4 %s, %s, %s, %s offen offset:%d sc1' % (a(128 + 4 * kb, 4), v(vL16), srd(S_WS), sT4, (kb & 3) * 1024))
        p.run(loads)
        mean, rstd = vT, vT + 2
        p('v_and_b32 %s, 15, %s' % (v(vT + 4), v(vL)))
        p('v_lshlrev_b32 %s, 2, %s' % (v(vT + 4), v(vT + 4)))
        p('s_lshl_b32 %s, %s, 6' % (sT0, sW))
        p('s_add_u32 %s, %s, %d' % (sT0, sT0, M_MEAN))
        p('v_add_u32 %s, %s, %s' % (v(vT + 4), sT0, v(vT + 4)))
        p('ds_read_b32 %s, %s' % (v(mean), v(vT + 4)))
        p('ds_read_b32 %s, %s offset:256' % (v(rstd), v(vT + 4)))
        p('v_mul_f32 %s, %s, %s' % (v(mean), v(mean), v(rstd)))
        g.gemm16(['W2_%d' % j for j in range(4)], acc, lambda ci, kb: 128 + 16 * ci + 4 * kb, prev=['V3'])
        g.release(['W2_3'])
        g.stamp('g3 mfma done')
        U = vT + 8
        for t in range(4):
            for i in range(2):
                xr = v(vXT + 2 * t + i)
                A = v(acc + 4 * t + 2 * i, 2)
                p('v_lshlrev_b32 %s, 16, %s' % (v(U), xr))
                p('v_and_b32 %s, 0xffff0000, %s' % (v(U + 1), xr))
                p('v_pk_add_f32 %s, %s, %s op_sel_hi:[1,0] neg_lo:[0,1] neg_hi:[0,1]' % (A, A, v(mean, 2)))
                p('v_pk_fma_f32 %s, %s, %s, %s op_sel_hi:[1,0,1]' % (A, v(U, 2), v(rstd, 2), A))
                p('v_cvt_pk_bf16_f32 %s, %s, %s' % (v(vX1K + 2 * t + i), v(acc + 4 * t + 2 * i), v(acc + 4 * t + 2 * i + 1)))
        ad = v(vT + 10)
        p('v_and_b32 %s, 15, %s' % (ad, v(vL)))
        p('v_and_b32 %s, 16, %s' % (v(U), v(vL)))
        p('v_lshl_add_u32 %s, %s, 1, %s' % (ad, v(U), ad))
        p('v_lshl_add_u32 %s, %s, 2, %s' % (ad, v(vCQ), ad))
        p('v_lshlrev_b32 %s, 4, %s' % (ad, ad))
        p('s_lshl_b32 %s, %s, 1' % (sT0, sM))
        p('s_add_u32 %s, %s, %s' % (sT0, sT0, sMW))
        p('s_lshl_b32 %s, %s, 15' % (sT0, sT0))
        p('s_lshl_b32 %s, %s, 12' % (sT1, sC))
        p('s_add_u32 %s, %s, %s' % (sT0, sT0, sT1))
        p('s_lshl_b32 %s, %s, 8' % (sT1, sNW))
        p('s_add_u32 %s, %s, %s' % (sT0, sT0, sT1))
        p('s_add_u32 %s, %s, %d' % (sT0, sT0, WS_X1))
        toks = [p('buffer_store_dwordx4 %s, %s, %s, %s offen sc1' % (v(vX1K, 4), ad, srd(S_WS), sT0)),
                p('buffer_store_dwordx4 %s, %s, %s, %s offen offset:2048 sc1' % (v(vX1K + 4, 4), ad, srd(S_WS), sT0))]
        s0, s1, q0, q1 = [v(vST + i) for i in range(4)]
        for i in range(4):
            p('v_mov_b32 %s, 0' % v(vST + i))
        for i in range(8):
            p('v_dot2c_f32_bf16 %s, %s, %s' % (v(vST + (i & 1)), sONE, v(vX1K + i)))
            p('v_dot2c_f32_bf16 %s, %s, %s' % (v(vST + 2 + (i & 1)), v(vX1K + i), v(vX1K + i)))
        p('v_add_f32 %s, %s, %s' % (s0, s0, s1))
        p('v_add_f32 %s, %s, %s' % (q0, q0, q1))
        p('v_permlane16_swap_b32 %s, %s' % (s0, q0))
        p('v_add_f32 %s, %s, %s' % (s0, s0, q0))
        p('v_mov_b32 %s, %s' % (q0, s0))
        p('v_permlane32_swap_b32 %s, %s' % (s0, q0))
        p('v_add_f32 %s, %s, %s' % (s0, s0, q0))
        p('v_lshlrev_b32 %s, 2, %s' % (ad, v(vL)))
        p('v_cmp_gt_u32 vcc, 32, %s' % v(vL))
        p('v_mov_b32 %s, 0x%x' % (v(U), OOB))
        p('v_cndmask_b32 %s, %s, %s, vcc' % (ad, v(U), ad))
        p('s_lshl_b32 %s, %s, 3' % (sT0, sT3))
        p('s_add_u32 %s, %s, %s' % (sT0, sT0, sC))
        p('s_lshl_b32 %s, %s, 7' % (sT0, sT0))
        p('s_add_u32 %s, %s, %d' % (sT0, sT0, WS_ST1))
        toks.append(p('buffer_store_dword %s, %s, %s, %s offen sc1' % (s0, ad, srd(S_WS), sT0)))
        g.stamp('x1 stored')

        def idx():
            p('s_lshl_b32 %s, %s, 1' % (sT0, sM))
            p('s_add_u32 %s, %s, %s' % (sT0, sT0, sMW))
            p('s_lshl_b32 %s, %s, 2' % (sT0, sT0))
            p('s_add_u32 %s, %s, %s' % (sT0, sT0, sNW))
            p('s_lshl_b32 %s, %s, 3' % (sT0, sT0))
            p('s_add_u32 %s, %s, %s' % (sT0, sT0, sC))
        return g.publish(toks, WS_F2, idx)

    def phi_items(g, acc, cs16, out, T):
        p = g.p
        it = []
        P = T
        B = T + 16
        W = T + 24
        E = T + 32
        ad = v(E)

        def wphi():
            p('v_bfe_u32 %s, %s, 2, 2' % (ad, v(vL)))
            p('v_lshlrev_b32 %s, 5, %s' % (ad, ad))
            p('v_lshl_add_u32 %s, %s, 3, %s' % (ad, v(vCQ), ad))
            p('v_and_b32 %s, 3, %s' % (v(E + 1), v(vL)))
            p('v_lshl_add_u32 %s, %s, 3, %s' % (ad, v(E + 1), ad))
            p('s_lshl_b32 %s, %s, 11' % (sT0, sNW))
            p('s_add_u32 %s, %s, %d' % (sT0, sT0, M_PHI))
            p('v_add_u32 %s, %s, %s' % (ad, sT0, ad))
            p('v_and_b32 %s, 16, %s' % (v(E + 1), v(vL)))
            p('v_lshlrev_b32 %s, 5, %s' % (v(E + 1), v(E + 1)))
            p('v_add_u32 %s, %s, %s' % (v(E + 2), ad, v(E + 1)))
            p('v_xor_b32 %s, 512, %s' % (v(E + 1), v(E + 1)))
            p('v_add_u32 %s, %s, %s' % (v(E + 3), ad, v(E + 1)))
            for s in range(2):
                for q in range(2):
                    p('ds_read_b64_tr_b16 %s, %s offset:%d' % (v(W + 4 * s + 2 * q, 2), v(E + 2 + s), s * 1024 + q * 256))
        it.append(wphi)
        for i in range(0, 16, 2):
            A = v(acc + i, 2)
            it.append('v_pk_fma_f32 %s, %s, %s, %s op_sel_hi:[1,0,1]' % (A, v(cs16 + i, 2), v(vMEAN, 2), A))
            it.append('v_pk_mul_f32 %s, %s, %s op_sel_hi:[1,0]' % (A, A, v(vRSTD, 2)))
            it.append('v_cvt_pk_bf16_f32 %s, %s, %s' % (v(B + i // 2), v(acc + i), v(acc + i + 1)))
        it.append('v_mfma_f32_32x32x16_bf16 %s, %s, %s, 0' % (v(P, 16), v(W, 4), v(B, 4)))
        it.append('v_mfma_f32_32x32x16_bf16 %s, %s, %s, %s' % (v(P, 16), v(W + 4, 4), v(B + 4, 4), v(P, 16)))
        for hd in range(2):
            q_ = P + 8 * hd
            mx, nm, bp, bn = E, E + 1, E + 2, E + 4
            x = lambda i: v(q_ + i)
            it.append('v_max3_f32 %s, %s, %s, %s' % (v(mx), x(0), x(1), x(2)))
            it.append('v_max3_f32 %s, -%s, -%s, -%s' % (v(nm), x(0), x(1), x(2)))
            it.append('v_max3_f32 %s, %s, %s, %s' % (v(mx), v(mx), x(3), x(4)))
            it.append('v_max3_f32 %s, %s, -%s, -%s' % (v(nm), v(nm), x(3), x(4)))
            it.append('v_max3_f32 %s, %s, %s, %s' % (v(mx), v(mx), x(5), x(6)))
            it.append('v_max3_f32 %s, %s, -%s, -%s' % (v(nm), v(nm), x(5), x(6)))
            it.append('v_max_f32 %s, %s, %s' % (v(mx), v(mx), x(7)))
            it.append('v_max_f32_e64 %s, %s, -%s' % (v(nm), v(nm), x(7)))
            it.append('v_permlane32_swap_b32 %s, %s' % (v(mx), v(nm)))
            it.append('v_max_f32 %s, %s, %s' % (v(mx), v(mx), v(nm)))
            it.append('v_mul_f32 %s, %s, %s' % (v(bp), hx(-LOG2E), v(mx)))
            it.append('v_mov_b32 %s, %s' % (v(bn), v(bp)))
            it.append('v_permlane32_swap_b32 %s, %s' % (v(bp), v(bn)))
            ep, en = acc, acc + 8
            for i in range(0, 8, 2):
                it.append('v_pk_fma_f32 %s, %s, %s, %s op_sel_hi:[1,1,0]' % (v(ep + i, 2), v(q_ + i, 2), sL2, v(bp, 2)))
                it.append('v_pk_fma_f32 %s, %s, %s, %s op_sel_hi:[1,1,0] neg_lo:[1,0,0] neg_hi:[1,0,0]' % (v(en + i, 2), v(q_ + i, 2), sL2, v(bn, 2)))
            for i in range(16):
                it.append('v_exp_f32 %s, %s' % (v(acc + i), v(acc + i)))
            sp, sn = E, E + 2
            t1, t2 = E + 4, E + 6
            it.append('v_pk_add_f32 %s, %s, %s' % (v(sp, 2), v(ep, 2), v(ep + 2, 2)))
            it.append('v_pk_add_f32 %s, %s, %s' % (v(sn, 2), v(en, 2), v(en + 2, 2)))
            it.append('v_pk_add_f32 %s, %s, %s' % (v(t1, 2), v(ep + 4, 2), v(ep + 6, 2)))
            it.append('v_pk_add_f32 %s, %s, %s' % (v(t2, 2), v(en + 4, 2), v(en + 6, 2)))
            it.append('v_pk_add_f32 %s, %s, %s' % (v(sp, 2), v(sp, 2), v(t1, 2)))
            it.append('v_pk_add_f32 %s, %s, %s' % (v(sn, 2), v(sn, 2), v(t2, 2)))
            it.append('v_add_f32 %s, %s, %s' % (v(sp), v(sp), v(sp + 1)))
            it.append('v_add_f32 %s, %s, %s' % (v(sn), v(sn), v(sn + 1)))
            it.append('v_permlane32_swap_b32 %s, %s' % (v(sp), v(sn)))
            it.append('v_add_f32 %s, %s, %s' % (v(sp), v(sp), v(sn)))
            it.append('v_rcp_f32 %s, %s' % (v(sp), v(sp)))
            it.append('v_mov_b32 %s, %s' % (v(sn), v(sp)))
            it.append('v_permlane32_swap_b32 %s, %s' % (v(sp), v(sn)))
            for i in range(0, 8, 2):
                it.append('v_pk_mul_f32 %s, %s, %s op_sel_hi:[1,0]' % (v(ep + i, 2), v(ep + i, 2), v(sp, 2)))
                it.append('v_pk_mul_f32 %s, %s, %s op_sel_hi:[1,0]' % (v(en + i, 2), v(en + i, 2), v(sn, 2)))
            for i in range(0, 16, 2):
                it.append('v_cvt_pk_bf16_f32 %s, %s, %s' % (v(out + 8 * hd + i // 2), v(acc + i), v(acc + i + 1)))
        return it

    def kv_epilogue(g, pub_x1):
        p = g.p
        T = vT
        csK, csV = vCSA, vCSA + 2
        PH = vACC
        CS16 = vACC + 16
        g.cs_bounce(csK, CS16, T)
        it = g.phi_items(vAK, CS16, PH, T)
        n = len(it)
        it = interleave(it, [g.D(1)] * 10)
        it.insert(len(it) * 2 // 5, pub_x1)
        p.run(it)
        ID = T
        d = v(T + 8)
        p('v_and_b32 %s, 31, %s' % (d, v(vL)))
        p('v_lshrrev_b32 %s, 2, %s' % (v(T + 9), v(vCQ)))
        p('v_sub_u32 %s, %s, %s' % (d, d, v(T + 9)))
        p('v_mov_b32 %s, 0x3f80' % v(T + 10))
        p('v_mov_b32 %s, 0x3f800000' % v(T + 11))
        for blk in range(2):
            for i in range(4):
                f = 16 * blk + 8 * (i >> 1) + 2 * (i & 1)
                p('v_cmp_eq_u32 vcc, %d, %s' % (f, d))
                p('v_cmp_eq_u32 s[74:75], %d, %s' % (f + 1, d))
                p('v_cndmask_b32 %s, 0, %s, vcc' % (v(ID + 4 * blk + i), v(T + 10)))
                p('v_cndmask_b32 %s, %s, %s, s[74:75]' % (v(ID + 4 * blk + i), v(ID + 4 * blk + i), v(T + 11)))
        TR = vACC + 16
        for hd in range(2):
            p('v_mfma_f32_32x32x16_bf16 %s, %s, %s, 0' % (v(TR + 16 * hd, 16), v(PH + 8 * hd, 4), v(ID, 4)))
            p('v_mfma_f32_32x32x16_bf16 %s, %s, %s, %s' % (v(TR + 16 * hd, 16), v(PH + 8 * hd + 4, 4), v(ID + 4, 4), v(TR + 16 * hd, 16)))
        g.dma(1)
        MN, RS = T + 16, T + 32
        p('s_lshl_b32 %s, %s, 7' % (sT0, sMW))
        p('s_add_u32 %s, %s, %d' % (sT0, sT0, M_MEAN))
        p('v_add_u32 %s, %s, %s' % (v(T + 12), sT0, v(vCQ)))
        for q in range(4):
            p('ds_read_b128 %s, %s offset:%d' % (v(MN + 4 * q, 4), v(T + 12), 32 * q))
            p('ds_read_b128 %s, %s offset:%d' % (v(RS + 4 * q, 4), v(T + 12), 256 + 32 * q))
        VP = vAK
        for i in range(0, 16, 2):
            A = v(vAV + i, 2)
            p('v_pk_fma_f32 %s, %s, %s, %s op_sel_hi:[1,0,1] neg_lo:[1,0,0] neg_hi:[1,0,0]' % (A, v(MN + i, 2), v(csV, 2), A))
            p('v_pk_mul_f32 %s, %s, %s' % (A, A, v(RS + i, 2)))
            p('v_cvt_pk_bf16_f32 %s, %s, %s' % (v(VP + i // 2), v(vAV + i), v(vAV + i + 1)))
        g.dma(1)
        p('v_and_b32 %s, 16, %s' % (v(T + 12), v(vL)))
        p('v_cmp_eq_u32 vcc, 0, %s' % v(T + 12))
        p('v_mov_b32 %s, %s' % (v(T + 13), sONE))
        V0, V1 = vAK + 8, T + 48
        for i in range(8):
            p('v_cndmask_b32 %s, %s, %s, vcc' % (v(V0 + i), v(T + 13), v(VP + i)))
            p('v_cndmask_b32 %s, %s, %s, vcc' % (v(V1 + i), v(VP + i), v(T + 13)))
        g.dma(1)
        PT = T + 16
        for hd in range(2):
            for i in range(0, 16, 2):
                p('v_cvt_pk_bf16_f32 %s, %s, %s' % (v(PT + 8 * hd + i // 2), v(TR + 16 * hd + i), v(TR + 16 * hd + i + 1)))
        KV = vACC + 16
        for hd in range(2):
            Vm = V0 if hd == 0 else V1
            p('v_mfma_f32_32x32x16_bf16 %s, %s, %s, 0' % (v(KV + 16 * hd, 16), v(PT + 8 * hd, 4), v(Vm, 4)))
        for hd in range(2):
            Vm = V0 if hd == 0 else V1
            p('v_mfma_f32_32x32x16_bf16 %s, %s, %s, %s' % (v(KV + 16 * hd, 16), v(PT + 8 * hd + 4, 4), v(Vm + 4, 4), v(KV + 16 * hd, 16)))
        xs = g.xslot
        p('s_cmp_eq_u32 %s, 0' % sMW)
        p('s_cselect_b64 vcc, -1, 0')
        p('v_add_u32 %s, %s, %s' % (v(T + 12), sWL, v(vL16)))
        p('v_add_u32 %s, %d, %s' % (v(T + 12), xs * SLOT, v(T + 12)))
        p('v_xor_b32 %s, 0x2000, %s' % (v(T + 13), v(T + 12)))
        S_, K_ = T + 16, T + 32
        for i in range(16):
            p('v_cndmask_b32 %s, %s, %s, vcc' % (v(S_ + i), v(KV + i), v(KV + 16 + i)))
            p('v_cndmask_b32 %s, %s, %s, vcc' % (v(K_ + i), v(KV + 16 + i), v(KV + i)))
        for q in range(4):
            p('ds_write_b128 %s, %s offset:%d' % (v(T + 12), v(S_ + 4 * q, 4), q * 1024))
        g.barrier()
        for q in range(4):
            p('ds_read_b128 %s, %s offset:%d' % (v(S_ + 4 * q, 4), v(T + 13), q * 1024))
        g.pending_free.append(xs)
        p('s_lshl_b32 %s, %s, 1' % (sT1, sC))
        p('s_add_u32 %s, %s, %s' % (sT1, sT1, sNW))
        p('s_lshl_b32 %s, %s, 1' % (sT1, sT1))
        p('s_add_u32 %s, %s, %s' % (sT1, sT1, sMW))
        p('s_lshl_b32 %s, %s, 7' % (sT1, sT1))
        p('s_add_u32 %s, %s, %s' % (sT1, sT1, sM))
        p('s_lshl_b32 %s, %s, 10' % (sT1, sT1))
        p('s_add_u32 %s, %s, %d' % (sT1, sT1, WS_KVP))
        toks = []
        for q in range(4):
            for i in range(0, 4, 2):
                p('v_pk_add_f32 %s, %s, %s' % (v(K_ + 4 * q + i, 2), v(K_ + 4 * q + i, 2), v(S_ + 4 * q + i, 2)))
            toks.append(p('buffer_store_dwordx4 %s, %s, %s, %s offen sc1' % (v(K_ + 4 * q, 4), v(vL16), srd(S_WS), sT1)))
            if q < 3:
                p('s_add_u32 %s, %s, 32768' % (sT1, sT1))

        def idx():
            p('s_lshl_b32 %s, %s, 1' % (sT0, sC))
            p('s_add_u32 %s, %s, %s' % (sT0, sT0, sNW))
            p('s_lshl_b32 %s, %s, 1' % (sT0, sT0))
            p('s_add_u32 %s, %s, %s' % (sT0, sT0, sMW))
            p('s_lshl_b32 %s, %s, 5' % (sT0, sT0))
            p('s_add_u32 %s, %s, %s' % (sT0, sT0, sM))
        return g.publish(toks, WS_FK, idx)

    def cs3(g, pub_kv):
        p = g.p
        names = ['W3_%d' % j for j in range(8)]
        g.acquire(names)
        for half, sreg in ((0, sT1), (1, sT2)):
            p('s_mov_b32 %s, %d' % (sreg, g.byname['W3_%d' % (4 * half)].slot * SLOT))
            for w in range(1, 4):
                p('s_cmp_eq_u32 %s, %d' % (sW, w))
                p('s_cselect_b32 %s, %d, %s' % (sreg, g.byname['W3_%d' % (4 * half + w)].slot * SLOT, sreg))
        AD = vT
        for half, sreg in ((0, sT1), (1, sT2)):
            for tt in range(2):
                p('v_add_u32 %s, %s, %s' % (v(AD + 2 * half + tt), sreg, v(vW4 + 3 * tt)))
        C = vT + 4
        for i in range(8):
            p('v_mov_b32 %s, 0' % v(C + i))
        steps = []
        n = 0
        for tile in range(4):
            for k in range(8):
                fb = vFB + 4 * (n % NFB)
                st = dict(reads=[], work=[])
                for q in range(2):
                    st['reads'].append('ds_read_b64_tr_b16 %s, %s offset:%d' % (v(fb + 2 * q, 2), v(AD + tile), (k >> 1) * 4096 + q * 2048 + (k & 1) * 1024))
                for i in range(4):
                    st['work'].append('v_dot2c_f32_bf16 %s, %s, %s' % (v(C + 2 * tile + (i & 1)), sONE, v(fb + i)))
                if n == 16:
                    st['work'].append(pub_kv)
                steps.append(st)
                n += 1
        g.pipeline(steps, 5)
        for tile in range(4):
            p('v_add_f32 %s, %s, %s' % (v(C + 2 * tile), v(C + 2 * tile), v(C + 2 * tile + 1)))
        for pr in range(2):
            p('v_permlane32_swap_b32 %s, %s' % (v(C + 4 * pr), v(C + 4 * pr + 2)))
            p('v_add_f32 %s, %s, %s' % (v(C + 4 * pr), v(C + 4 * pr), v(C + 4 * pr + 2)))
        p('v_lshlrev_b32 %s, 2, %s' % (v(AD), v(vL)))
        p('v_add_u32 %s, %d, %s' % (v(AD), M_CS3, v(AD)))
        p('s_lshl_b32 %s, %s, 9' % (sT0, sW))
        p('v_add_u32 %s, %s, %s' % (v(AD + 1), sT0, v(AD)))
        p('ds_write2st64_b32 %s, %s, %s offset0:0 offset1:1' % (v(AD + 1), v(C), v(C + 4)))
        g.barrier()
        for w in range(4):
            p('ds_read2st64_b32 %s, %s offset0:%d offset1:%d' % (v(C + 2 * w, 2), v(AD), 2 * w, 2 * w + 1))
        p('v_pk_add_f32 %s, %s, %s' % (v(C, 2), v(C, 2), v(C + 2, 2)))
        p('v_pk_add_f32 %s, %s, %s' % (v(C + 4, 2), v(C + 4, 2), v(C + 6, 2)))
        p('v_pk_add_f32 %s, %s, %s' % (v(C, 2), v(C, 2), v(C + 4, 2)))
        p('ds_write2st64_b32 %s, %s, %s offset0:8 offset1:9' % (v(AD + 1), v(C), v(C + 1)))

    def reducer_issue(g):
        p = g.p
        g.poll_check()
        ad = v(vT + 62)
        p('v_lshrrev_b32 %s, 3, %s' % (ad, v(vL)))
        p('v_and_b32 %s, 7, %s' % (v(vT + 61), v(vL)))
        p('v_lshlrev_b32 %s, 4, %s' % (v(vT + 61), v(vT + 61)))
        p('v_lshl_add_u32 %s, %s, 10, %s' % (ad, ad, v(vT + 61)))
        p('s_lshl_b32 %s, %s, 4' % (sT0, sC))
        p('s_lshr_b32 %s, %s, 1' % (sT1, sM))
        p('s_add_u32 %s, %s, %s' % (sT0, sT0, sT1))
        p('s_lshl_b32 %s, %s, 15' % (sT0, sT0))
        p('s_and_b32 %s, %s, 1' % (sT1, sM))
        p('s_lshl_b32 %s, %s, 9' % (sT1, sT1))
        p('s_add_u32 %s, %s, %s' % (sT0, sT0, sT1))
        p('s_lshl_b32 %s, %s, 7' % (sT1, sW))
        p('s_add_u32 %s, %s, %s' % (sT0, sT0, sT1))
        p('s_add_u32 %s, %s, %d' % (sT0, sT0, WS_KVP))
        for u in range(4):
            p('buffer_load_dwordx4 %s, %s, %s, %s offen sc1' % (v(vAK + 4 * u, 4), ad, srd(S_WS), sT0))
            if u < 3:
                p('s_add_u32 %s, %s, 8192' % (sT0, sT0))

    def reducer_poll_addr(g):
        p = g.p
        p('v_and_b32 %s, 31, %s' % (v(vPA), v(vL)))
        p('v_lshlrev_b32 %s, 2, %s' % (v(vPA), v(vPA)))
        p('s_lshl_b32 %s, %s, 2' % (sT0, sC))
        p('s_lshr_b32 %s, %s, 3' % (sT1, sM))
        p('s_add_u32 %s, %s, %s' % (sT0, sT0, sT1))
        p('s_lshl_b32 %s, %s, 7' % (sT0, sT0))
        p('s_add_u32 %s, %s, %d' % (sT0, sT0, WS_FK))
        p('v_add_u32 %s, %s, %s' % (v(vPA), sT0, v(vPA)))

    def reducer_finish(g):
        p = g.p
        R = vAK
        for i in range(4):
            p('v_add_f32 %s, %s, %s' % (v(R + i), v(R + i), v(R + 4 + i)))
            p('v_add_f32 %s, %s, %s' % (v(R + 8 + i), v(R + 8 + i), v(R + 12 + i)))
        for i in range(4):
            p('v_add_f32 %s, %s, %s' % (v(R + i), v(R + i), v(R + 8 + i)))
        for i in range(4):
            p('v_add_f32_dpp %s, %s, %s row_ror:8 row_mask:0xf bank_mask:0xf' % (v(R + 4 + i), v(R + i), v(R + i)))
        for sw in ('v_permlane16_swap_b32', 'v_permlane32_swap_b32'):
            for i in range(4):
                p('v_mov_b32 %s, %s' % (v(R + i), v(R + 4 + i)))
            for i in range(4):
                p('%s %s, %s' % (sw, v(R + i), v(R + 4 + i)))
            for i in range(4):
                p('v_add_f32 %s, %s, %s' % (v(R + 4 + i), v(R + i), v(R + 4 + i)))
        p('v_cvt_pk_bf16_f32 %s, %s, %s' % (v(R), v(R + 4), v(R + 5)))
        p('v_cvt_pk_bf16_f32 %s, %s, %s' % (v(R + 1), v(R + 6), v(R + 7)))
        ad = v(R + 2)
        p('v_cmp_gt_u32 vcc, 8, %s' % v(vL))
        p('v_mov_b32 %s, 0x%x' % (ad, OOB))
        p('v_cndmask_b32 %s, %s, %s, vcc' % (ad, ad, v(vL16)))
        p('s_lshl_b32 %s, %s, 3' % (sT0, sC))
        p('s_lshr_b32 %s, %s, 2' % (sT1, sM))
        p('s_add_u32 %s, %s, %s' % (sT0, sT0, sT1))
        p('s_lshl_b32 %s, %s, 10' % (sT0, sT0))
        p('s_and_b32 %s, %s, 1' % (sT1, sM))
        p('s_lshl_b32 %s, %s, 9' % (sT1, sT1))
        p('s_add_u32 %s, %s, %s' % (sT0, sT0, sT1))
        p('s_lshl_b32 %s, %s, 7' % (sT1, sW))
        p('s_add_u32 %s, %s, %s' % (sT0, sT0, sT1))
        p('s_and_b32 %s, %s, 2' % (sT1, sM))
        p('s_lshl_b32 %s, %s, 2' % (sT1, sT1))
        p('s_add_u32 %s, %s, %s' % (sT0, sT0, sT1))
        p('s_add_u32 %s, %s, %d' % (sT0, sT0, WS_KVF))
        tok = p('buffer_store_dwordx2 %s, %s, %s, %s offen sc1' % (v(R, 2), ad, srd(S_WS), sT0))

        def idx():
            p('s_lshl_b32 %s, %s, 5' % (sT0, sC))
            p('s_add_u32 %s, %s, %s' % (sT0, sT0, sM))
            p('s_lshl_b32 %s, %s, 2' % (sT0, sT0))
            p('s_add_u32 %s, %s, %s' % (sT0, sT0, sW))
        return g.publish([tok], WS_FR, idx)

    def g4(g):
        p = g.p
        g.poll_check()
        g.stamp('x1 seen')
        T = vT
        ad = v(T)
        p('v_and_b32 %s, 16, %s' % (ad, v(vL)))
        p('v_lshlrev_b32 %s, 6, %s' % (ad, ad))
        p('v_lshl_add_u32 %s, %s, 2, %s' % (ad, v(vCQ), ad))
        p('v_and_b32 %s, 15, %s' % (v(T + 1), v(vL)))
        p('v_lshl_add_u32 %s, %s, 2, %s' % (ad, v(T + 1), ad))
        p('s_lshl_b32 %s, %s, 11' % (sT0, sI4R))
        p('s_add_u32 %s, %s, %d' % (sT0, sT0, WS_ST1))
        p('s_lshl_b32 %s, %s, 15' % (sT4, sI4R))
        p('s_add_u32 %s, %s, %d' % (sT4, sT4, WS_X1))
        loads = []
        for k in range(32):
            it = []
            if k & 3 == 0 and k:
                it.append('s_add_u32 %s, %s, 4096' % (sT4, sT4))
            it.append('buffer_load_dwordx4 %s, %s, %s, %s offen offset:%d sc1' % (a(128 + 4 * k, 4), v(vL16), srd(S_WS4), sT4, (k & 3) * 1024))
            loads.append(it)
        PRE = 12
        for k in range(PRE):
            p.run(loads[k])
        for c in range(8):
            p('buffer_load_dword %s, %s, %s, %s offen offset:%d sc1' % (v(vST + c), ad, srd(S_WS4), sT0, c * 128))
        HA = vCSA
        p('v_and_b32 %s, 16, %s' % (v(HA), v(vL)))
        p('v_mul_u32_u24 %s, 3584, %s' % (v(HA), v(HA)))
        p('v_add_u32 %s, %s, %s' % (v(T + 1), v(T + 1), v(vCQ)))
        p('v_lshl_add_u32 %s, %s, 4, %s' % (v(HA), v(T + 1), v(HA)))
        p('s_mul_i32 %s, %s, 28' % (sT3, sI4R))
        p('s_add_u32 %s, %s, %s' % (sT3, sT3, sC14))
        p('s_lshl_b32 %s, %s, 12' % (sT3, sT3))
        p('s_add_u32 %s, %s, %d' % (sT3, sT3, WS_H2))
        g.reducer_poll_addr()

        def mk(tiles, extra=None, pre=None):
            steps = []
            n = 0
            for k in range(32):
                for tt in tiles:
                    nm = 'W3_%d' % (4 * (tt >> 1) + (k >> 3))
                    k8 = k & 7
                    fb = vFB + 4 * (n % NFB)
                    st = dict(pre=[], reads=[], work=[])
                    if pre and tt == tiles[0] and k in pre:
                        st['pre'] += pre[k]
                    for q in range(2):
                        st['reads'].append('ds_read_b64_tr_b16 %s, %s' % (v(fb + 2 * q, 2), g.lds(nm, vW4 + 3 * (tt & 1), (k8 >> 1) * 4096 + q * 2048 + (k8 & 1) * 1024)))
                    acc = vACC + 16 * tt
                    st['work'].append('v_mfma_f32_32x32x16_bf16 %s, %s, %s, %s' % (v(acc, 16), v(fb, 4), a(128 + 4 * k, 4), '0' if k == 0 else v(acc, 16)))
                    if extra and tt == tiles[-1] and k in extra:
                        st['work'] += extra[k]
                    steps.append(st)
                    n += 1
            return steps
        extra = {k: loads[k + PRE] for k in range(32 - PRE)}
        extra[24] = [g.poll_issue]
        g.pipeline(mk([0, 1], extra), 4)
        g.release(['W3_%d' % j for j in range(4)])
        g.stamp('g4 phase a done')
        g.reducer_issue()
        for i in range(0, 8, 4):
            p('v_add_f32 %s, %s, %s' % (v(vST + i), v(vST + i), v(vST + i + 1)))
            p('v_add_f32 %s, %s, %s' % (v(vST + i + 2), v(vST + i + 2), v(vST + i + 3)))
        p('v_add_f32 %s, %s, %s' % (v(vST), v(vST), v(vST + 2)))
        p('v_add_f32 %s, %s, %s' % (v(vST + 4), v(vST + 4), v(vST + 6)))
        p('v_add_f32 %s, %s, %s' % (v(vST), v(vST), v(vST + 4)))
        p('v_mov_b32 %s, %s' % (v(vST + 1), v(vST)))
        p('v_permlane32_swap_b32 %s, %s' % (v(vST), v(vST + 1)))
        nm, k0, k1, S, R = vST + 2, vST + 4, vST + 6, vST, vCSA + 1
        g.ln_stats(v(vST), v(vST + 1), v(nm), v(R), v(vST + 3))
        p('v_sub_f32 %s, 0, %s' % (v(nm), v(nm)))
        p('v_mul_f32 %s, %s, %s' % (v(k0), hx(GK0), v(R)))
        p('v_mul_f32 %s, %s, %s' % (v(k1), v(R), v(R)))
        p('v_mul_f32 %s, %s, %s' % (v(k1), v(k1), v(R)))
        p('v_mul_f32 %s, %s, %s' % (v(k1), hx(GK1), v(k1)))
        CA = vCSA + 2
        p('s_lshl_b32 %s, %s, 9' % (sT0, sW))
        p('s_add_u32 %s, %s, %d' % (sT0, sT0, M_CS3F))
        p('v_add_u32 %s, %s, %s' % (v(CA), sT0, v(vCQ)))
        g.barrier()

        def epi(tt, pk, toks):
            cs = T + 16 * (tt & 1)
            out = T + 32 + 8 * (tt & 1)
            it = ['ds_read_b128 %s, %s offset:%d' % (v(cs + 4 * q, 4), v(CA), tt * 128 + 32 * q) for q in range(4)]
            gi = g.gelu_items(vACC + 16 * tt, 16, cs, nm, k0, k1, S, out, T + 48, pk=pk)
            half = len(gi) // 2
            for s in range(2):
                it += gi[s * half:(s + 1) * half]
                it.append(lambda s=s: toks.append(p('buffer_store_dwordx4 %s, %s, %s, %s offen offset:%d sc1' % (v(out + 4 * s, 4), v(HA), srd(S_WS4), sT3, tt * 1024 + s * 512))))
            return it

        def idx():
            p('s_lshl_b32 %s, %s, 5' % (sT0, sI4R))
            p('s_add_u32 %s, %s, %s' % (sT0, sT0, sC14))
        ta, tb = [], []
        box = {}
        e01 = epi(0, True, ta) + epi(1, True, ta)
        p.run(interleave(e01, [g.D(1)] * 12))
        pub_r = g.reducer_finish()
        g.stamp('g4 epi01 done')
        extra = {k: [g.D(1)] for k in range(0, 32)}
        extra[6] = extra[6] + [g.publish(ta, WS_F3A, idx, ws=S_WS4), pub_r]
        g.pipeline(mk([2, 3], extra), 4)
        g.release(['W3_%d' % j for j in range(4, 8)])
        g.acquire(['Q0'])
        e23 = epi(2, True, tb) + epi(3, True, tb)
        p.run(interleave(e23, [g.D(1)] * 12))
        g.stamp('g4 done')
        return g.publish(tb, WS_F3B, idx, ws=S_WS4)

    def o_calc(g, PH):
        p = g.p
        T = vT
        g.poll_check()
        p('s_lshl_b32 %s, %s, 1' % (sT0, sC))
        p('s_add_u32 %s, %s, %s' % (sT0, sT0, sNW))
        p('s_lshl_b32 %s, %s, 12' % (sT1, sT0))
        p('s_add_u32 %s, %s, %d' % (sT1, sT1, WS_KVF))
        for i in range(4):
            p('buffer_load_dwordx4 %s, %s, %s, %s offen offset:%d sc1' % (v(T + 4 * i, 4), v(vL16), srd(S_WS), sT1, i * 1024))
        ad = v(T + 16)
        p('v_and_b32 %s, 16, %s' % (ad, v(vL)))
        p('v_lshlrev_b32 %s, 10, %s' % (ad, ad))
        p('v_and_b32 %s, 15, %s' % (v(T + 17), v(vL)))
        p('v_add_u32 %s, %s, %s' % (v(T + 17), v(T + 17), v(vCQ)))
        p('v_lshl_add_u32 %s, %s, 4, %s' % (ad, v(T + 17), ad))
        p('s_lshl_b32 %s, %s, 1' % (sT1, sM))
        p('s_add_u32 %s, %s, %s' % (sT1, sT1, sMW))
        p('s_lshl_b32 %s, %s, 5' % (sT1, sT1))
        p('s_add_u32 %s, %s, %s' % (sT1, sT1, sT0))
        p('s_lshl_b32 %s, %s, 10' % (sT1, sT1))
        p('s_add_u32 %s, %s, %d' % (sT1, sT1, WS_O))
        D = vACC + 32
        for hd in range(2):
            p('v_mfma_f32_32x32x16_bf16 %s, %s, %s, 0' % (v(D + 16 * hd, 16), v(T + 8 * hd, 4), v(PH + 8 * hd, 4)))
        for hd in range(2):
            p('v_mfma_f32_32x32x16_bf16 %s, %s, %s, %s' % (v(D + 16 * hd, 16), v(T + 8 * hd + 4, 4), v(PH + 8 * hd + 4, 4), v(D + 16 * hd, 16)))
        toks = []
        for hd in range(2):
            num = D + 16 * hd + 8 * hd
            den = D + 16 * hd + 8 * (1 - hd)
            p('v_add_f32 %s, %s, %s' % (v(den), hx(1e-6), v(den)))
            p('v_rcp_f32 %s, %s' % (v(den), v(den)))
            for i in range(0, 8, 2):
                p('v_pk_mul_f32 %s, %s, %s op_sel_hi:[1,0]' % (v(num + i, 2), v(num + i, 2), v(den, 2)))
            for i in range(0, 8, 2):
                p('v_cvt_pk_bf16_f32 %s, %s, %s' % (v(T + 20 + 4 * hd + i // 2), v(num + i), v(num + i + 1)))
            toks.append(p('buffer_store_dwordx4 %s, %s, %s, %s offen offset:%d sc1' % (v(T + 20 + 4 * hd, 4), ad, srd(S_WS), sT1, hd * 512)))

        def idx():
            p('s_lshl_b32 %s, %s, 1' % (sT0, sM))
            p('s_add_u32 %s, %s, %s' % (sT0, sT0, sMW))
            p('s_lshl_b32 %s, %s, 4' % (sT0, sT0))
            p('s_add_u32 %s, %s, %s' % (sT0, sT0, sC))
            p('s_lshl_b32 %s, %s, 1' % (sT0, sT0))
            p('s_add_u32 %s, %s, %s' % (sT0, sT0, sNW))
        return g.publish(toks, WS_FO, idx)

    def fr_poll_addr(g):
        p = g.p
        p('v_lshlrev_b32 %s, 2, %s' % (v(vPA), v(vL)))
        p('s_lshl_b32 %s, %s, 1' % (sT0, sC))
        p('s_add_u32 %s, %s, %s' % (sT0, sT0, sNW))
        p('s_lshl_b32 %s, %s, 8' % (sT0, sT0))
        p('s_add_u32 %s, %s, %d' % (sT0, sT0, WS_FR))
        p('v_add_u32 %s, %s, %s' % (v(vPA), sT0, v(vPA)))

    def tail(g, pub_h2b):
        p = g.p
        T = vT
        sR32 = sI4R
        sH2 = sC14
        sOB = sW3B
        g.fr_poll_addr()
        extra = {10: [pub_h2b], 20: [g.poll_issue]}
        g.qkv_tile('Q', vAK, True, vCSA, extra=extra, first_acquired=True)
        g.release(['Q3'])
        g.stamp('q tile done')
        p('s_lshl_b32 %s, %s, 1' % (sR32, sM))
        p('s_add_u32 %s, %s, %s' % (sR32, sR32, sMW))
        p('s_lshl_b32 %s, %s, 2' % (sT0, sM))
        p('s_add_u32 %s, %s, %s' % (sT0, sT0, sW))
        p('s_mul_i32 %s, %s, 57344' % (sH2, sT0))
        p('s_add_u32 %s, %s, %d' % (sH2, sH2, WS_H2))
        p('s_lshl_b32 %s, %s, 14' % (sOB, sT0))
        p('s_add_u32 %s, %s, %d' % (sOB, sOB, WS_O))
        PH = vAV
        g.cs_bounce(vCSA, vACC, T)
        p.run(interleave(g.phi_items(vAK, vACC, PH, T), [g.D(1)] * 8))
        pub_o = g.o_calc(PH)
        g.stamp('o stored')

        seq = []
        for j in range(14):
            kb0 = 8 * j if j < 7 else 8 * (j - 7) + 2
            for i in range(4):
                seq.append((sH2, kb0 + 4 * (i >> 1) + (i & 1)))
        for kb in range(16):
            seq.append((sOB, kb))
        areg = lambda i: (128 + 4 * i) % 256

        def ld(i):
            base, kb = seq[i]

            def f():
                p('s_add_u32 %s, %s, %d' % (sT4, base, (kb >> 2) * 4096))
                p('buffer_load_dwordx4 %s, %s, %s, %s offen offset:%d sc1' % (a(areg(i), 4), v(vL16), srd(S_WS), sT4, (kb & 3) * 1024))
            return f
        g.line_poll_addr(WS_F3A, sR32, 13)
        g.poll_issue()
        g.poll_check()
        g.stamp('h2a seen')
        g.line_poll_addr(WS_F3B, sR32, 13)
        PRE = 12
        for i in range(PRE):
            ld(i)()
        g.poll_issue()
        nxt = [PRE]

        def pre_step(base, limit, hooks):
            def f(ci, kb, t):
                it = []
                n = base + 4 * ci + kb
                if (n, t) in hooks:
                    it += hooks[(n, t)]
                if t == 0:
                    def go():
                        if nxt[0] < limit():
                            ld(nxt[0])()
                            nxt[0] += 1
                    it.append(go)
                if t == 2:
                    it.append(g.D(1))
                return it
            return f
        lim = [28]

        def open_b():
            g.poll_check()
            lim[0] = 56
            g.line_poll_addr(WS_FO, sR32)

        def open_o():
            g.poll_check()
            lim[0] = 72
        hooks = {(3, 1): [pub_o], (16, 1): [open_b], (36, 1): [g.poll_issue], (44, 1): [open_o]}
        acc5, acc6 = vACC, vACC + 16
        g.gemm16(['W4_%d' % j for j in range(14)], acc5, lambda ci, kb: areg(4 * ci + kb), pre_step=pre_step(0, lambda: lim[0], hooks))
        g.stamp('g5 done')
        g.gemm16(['WO_%d' % j for j in range(4)], acc6, lambda ci, kb: areg(56 + 4 * ci + kb), prev=['W4_13'], pre_step=pre_step(56, lambda: lim[0], {}))
        assert nxt[0] == 72
        U = T
        for t in range(4):
            for i in range(2):
                Y = v(acc5 + 4 * t + 2 * i, 2)
                y0, y1 = acc5 + 4 * t + 2 * i, acc5 + 4 * t + 2 * i + 1
                u = U + 4 * ((2 * t + i) & 3)
                p('v_lshlrev_b32 %s, 16, %s' % (v(u), v(vX1K + 2 * t + i)))
                p('v_and_b32 %s, 0xffff0000, %s' % (v(u + 1), v(vX1K + 2 * t + i)))
                p('v_pk_add_f32 %s, %s, %s' % (Y, Y, v(u, 2)))
                p('v_pk_mul_f32 %s, %s, %s neg_lo:[1,0] neg_hi:[1,0]' % (v(u, 2), Y, sL2))
                p('v_exp_f32 %s, %s' % (v(u), v(u)))
                p('v_exp_f32 %s, %s' % (v(u + 1), v(u + 1)))
                p('v_pk_mul_f32 %s, %s, %s' % (Y, Y, v(acc6 + 4 * t + 2 * i, 2)))
                p('v_add_f32 %s, 1.0, %s' % (v(u), v(u)))
                p('v_add_f32 %s, 1.0, %s' % (v(u + 1), v(u + 1)))
                p('v_rcp_f32 %s, %s' % (v(u), v(u)))
                p('v_rcp_f32 %s, %s' % (v(u + 1), v(u + 1)))
                p('v_lshlrev_b32 %s, 16, %s' % (v(u + 2), v(vXT + 2 * t + i)))
                p('v_and_b32 %s, 0xffff0000, %s' % (v(u + 3), v(vXT + 2 * t + i)))
                p('v_pk_fma_f32 %s, %s, %s, %s' % (Y, Y, v(u, 2), v(u + 2, 2)))
                p('v_cvt_pk_bf16_f32 %s, %s, %s' % (v(T + 16 + 2 * t + i), v(y0), v(y1)))
            p('buffer_store_dwordx2 %s, %s, %s, 0 offen offset:%d' % (v(T + 16 + 2 * t, 2), v(vXO), srd(S_OUT), 32 * t))

    def build(g):
        p = g.p
        g.setup()
        pub_h = g.g2()
        if g.stop <= 1:
            pub_h()
            return g.finish()
        g.g3_poll_addr()
        g.qkv_tile('K', vAK, True, vCSA, extra={12: [pub_h]}, first_acquired=True)
        g.qkv_tile('V', vAV, False, vCSA + 2, extra={20: [g.poll_issue]}, prev=['K3'])
        g.stamp('kv tiles done')
        pub_x1 = g.g3()
        if g.stop <= 2:
            pub_x1()
            return g.finish()
        p.wait(vm=[g.tok_phi])
        g.barrier()
        g.xslot = g.free.pop()
        pub_kv = g.kv_epilogue(pub_x1)
        g.line_poll_addr(WS_F2, sI4R)
        g.barrier()
        g.cs3(pub_kv)
        g.poll_issue()
        if g.stop <= 3:
            return g.finish()
        pub_h2b = g.g4()
        if g.stop <= 4:
            pub_h2b()
            return g.finish()
        g.tail(pub_h2b)
        g.stamp('end')
        return g.finish()

    def finish(g):
        p = g.p
        skip = p.newlabel('L_noep')
        p('s_or_b32 %s, s2, %s' % (sT0, sW))
        p('s_cbranch_scc1 %s' % skip)
        st = p.snapshot()
        p('s_mov_b32 %s, %d' % (sT0, WS_EP))
        g.flag_store(sT0)
        p.label(skip)
        p.merge(st)
        if g.stamps:
            p.wait_all(lg=True)
            for i in range(16):
                if i < g.nst:
                    p('v_mov_b32 %s, s%d' % (v(vT + i), STAMP0 + 2 * i))
                else:
                    p('v_mov_b32 %s, 0' % v(vT + i))
            p('s_lshl_b32 %s, s2, 2' % sT0)
            p('s_add_u32 %s, %s, %s' % (sT0, sT0, sW))
            p('s_lshl_b32 %s, %s, 6' % (sT0, sT0))
            p('s_add_u32 %s, %s, %d' % (sT0, sT0, WS_DBG))
            for q in range(4):
                p('buffer_store_dwordx4 %s, %s, %s, %s offen offset:%d' % (v(vT + 4 * q, 4), v(vF0), srd(S_WS), sT0, 16 * q))
        p.label('L_end')
        p('s_endpgm')
        hdr = open(os.path.join(os.path.dirname(os.path.abspath(__file__)), 'header.txt')).read()
        return wrap(p.text(), 256, 256, LDS_BYTES, 256, 256, 102, hdr)


if __name__ == '__main__':
    import argparse
    ap = argparse.ArgumentParser()
    ap.add_argument('-o', default='k.s')
    ap.add_argument('--stop', type=int, default=99)
    ap.add_argument('--stamps', action='store_true')
    ap.add_argument('--burst', type=int, default=9)
    args = ap.parse_args()
    g = Gen(args.stop, args.stamps, args.burst)
    txt = g.build()
    open(args.o, 'w').write(txt)
    print('instrs', g.p.count, 'nops', g.p.nops, 'bytes', len(txt), 'NV', NV, 'maxv', g.p.maxv, 'maxa', g.p.maxa, 'maxs', g.p.maxs)
    print('stamps', g.stnames)
```

```python
import re, copy

REG_RE = re.compile(r'^(-|neg\()?(abs\()?\|?([vas])(?:(\d+)|\[(\d+):(\d+)\])\|?\)?\)?$')


def regs_of(tok):
    tok = tok.strip()
    if tok in ('vcc',):
        return ['vcc']
    if tok in ('vcc_lo', 'vcc_hi'):
        return ['vcc']
    if tok in ('exec', 'exec_lo', 'exec_hi'):
        return ['exec']
    if tok == 'm0':
        return ['m0']
    if tok == 'scc':
        return ['scc']
    m = REG_RE.match(tok)
    if not m:
        return []
    k = m.group(3)
    if m.group(4) is not None:
        return [k + m.group(4)]
    return [k + str(i) for i in range(int(m.group(5)), int(m.group(6)) + 1)]


TRANS = ('v_exp_f32', 'v_log_f32', 'v_rcp_f32', 'v_rsq_f32', 'v_sqrt_f32', 'v_sin_f32', 'v_cos_f32')
RMW = ('v_fmac_f32', 'v_dot2c_f32_bf16', 'v_pk_fmac_f16', 'v_fmac_f32_e32', 'v_dot2c_f32_bf16_e32')


class Ins:
    __slots__ = ('text', 'op', 'reads', 'writes', 'cls', 'passes', 'srcc', 'srcab', 'wide_data', 'is_dma', 'sreads_vmem')

    def __init__(s, text):
        s.text = text
        t = text.split(';')[0].strip()
        parts = t.split(None, 1)
        op = parts[0]
        s.op = op
        rest = parts[1] if len(parts) > 1 else ''
        ops = []
        depth = 0
        cur = ''
        for ch in rest:
            if ch == '[':
                depth += 1
            if ch == ']':
                depth -= 1
            if ch == ',' and depth == 0:
                ops.append(cur.strip())
                cur = ''
            else:
                cur += ch
        if cur.strip():
            ops.append(cur.strip())
        mods = []
        if ops:
            sp = ops[-1].split()
            ops[-1] = sp[0]
            mods = sp[1:]
        R = lambda i: regs_of(ops[i]) if i < len(ops) else []
        allr = lambda a: [r for i in range(a, len(ops)) for r in R(i)]
        s.reads, s.writes = [], []
        s.cls = 'other'
        s.passes = 0
        s.srcc = []
        s.srcab = []
        s.wide_data = []
        s.is_dma = False
        base = op.replace('_e32', '').replace('_e64', '').replace('_dpp', '').replace('_sdwa', '')
        if op.startswith('v_mfma'):
            s.cls = 'mfma'
            s.passes = 8 if '32x32' in op else 4
            s.writes = R(0)
            s.srcab = R(1) + R(2)
            s.srcc = R(3)
            s.reads = s.srcab + s.srcc
        elif op.startswith('v_'):
            s.cls = 'valu'
            if base in TRANS:
                s.cls = 'trans'
            if base.startswith('v_dot2'):
                s.cls = 'dot'
            if base.startswith('v_permlane'):
                s.cls = 'permlane'
                s.writes = R(0) + R(1)
                s.reads = R(0) + R(1)
            elif base.startswith('v_cmp'):
                s.writes = R(0)
                s.reads = allr(1)
            elif base in ('v_readfirstlane_b32', 'v_readlane_b32'):
                s.cls = 'readlane'
                s.writes = R(0)
                s.reads = allr(1)
            elif base in ('v_add_co_u32', 'v_sub_co_u32', 'v_addc_co_u32', 'v_subb_co_u32'):
                s.writes = R(0) + R(1)
                s.reads = allr(2)
            else:
                s.writes = R(0)
                s.reads = allr(1)
                if base in RMW:
                    s.reads += R(0)
                if base == 'v_cndmask_b32' and len(ops) == 3:
                    s.reads += ['vcc']
            if any(m.startswith(('row_', 'quad_perm', 'wave_')) for m in mods):
                s.cls = 'dpp'
                s.reads += R(0)
        elif op.startswith('ds_'):
            s.cls = 'ds'
            if op.startswith('ds_read') or op.startswith('ds_bpermute') or op.startswith('ds_swizzle') or op.startswith('ds_permute'):
                s.writes = R(0)
                s.reads = allr(1)
            else:
                s.reads = allr(0)
        elif op.startswith('buffer_') or op.startswith('global_'):
            s.cls = 'vmem'
            if 'lds' in mods or '_lds_' in op:
                s.is_dma = True
                s.reads = allr(0) + ['m0']
            elif '_load' in op:
                s.writes = R(0)
                s.reads = allr(1)
                if 'd16' in op:
                    s.reads += R(0)
            elif op.startswith('buffer_store') or op.startswith('buffer_atomic'):
                s.reads = allr(0)
                if 'x4' in op or 'x3' in op:
                    s.wide_data = R(0)
            elif op.startswith('global_store'):
                s.reads = allr(0)
                if 'x4' in op or 'x3' in op:
                    s.wide_data = R(1)
            else:
                s.reads = allr(0)
        elif op.startswith('s_load') or op.startswith('s_buffer_load') or op in ('s_memtime', 's_memrealtime'):
            s.cls = 'smem'
            s.writes = R(0)
            s.reads = allr(1)
        elif op.startswith('s_'):
            s.cls = 'salu'
            if op.startswith('s_cmp') or op.startswith('s_bitcmp'):
                s.reads = allr(0)
                s.writes = ['scc']
            elif op.startswith('s_cbranch') or op in ('s_branch', 's_barrier', 's_nop', 's_waitcnt', 's_endpgm', 's_sleep', 's_setprio'):
                pass
            else:
                s.writes = R(0)
                s.reads = allr(1)
                if 'saveexec' in op:
                    s.writes += ['exec']
                    s.reads += ['exec']
        else:
            raise ValueError('unknown instr ' + text)

    def is_valu(s):
        return s.cls in ('valu', 'trans', 'dot', 'permlane', 'readlane', 'dpp')


def need_states(p, c):
    n = 0
    pw = set(p.writes)
    cr = set(c.reads)
    cw = set(c.writes)
    vec = lambda S: {r for r in S if r[0] in 'va' and r != 'vcc'}
    sca = lambda S: {r for r in S if r[0] == 's' or r == 'vcc'}
    if p.is_valu():
        pv = vec(pw)
        if c.cls == 'mfma' and pv & cr:
            n = max(n, 2)
        if c.cls in ('permlane', 'dpp') and pv & cr:
            n = max(n, 2)
        if c.cls == 'readlane' and pv & cr:
            n = max(n, 1)
        if p.cls == 'trans' and c.is_valu() and c.cls != 'trans' and pv & cr:
            n = max(n, 1)
        if p.cls == 'trans' and c.cls == 'trans' and pv & cr:
            n = max(n, 1)
        if p.cls == 'dot':
            if c.cls == 'dot' and c.op == p.op:
                ab = set(c.reads) - set(c.writes)
                if pv & ab:
                    n = max(n, 3)
            elif pv & (cr | cw):
                n = max(n, 3)
        ps = sca(pw)
        if ps:
            if c.is_valu() and ps & cr:
                n = max(n, 4 if c.cls == 'readlane' else 2)
            if c.cls == 'vmem' and ps & cr:
                n = max(n, 5)
            if c.cls in ('salu', 'smem') and ps & cr:
                n = max(n, 1)
        if 'exec' in pw:
            n = max(n, 5)
    if p.cls == 'mfma':
        D = set(p.writes)
        big = p.passes == 8
        if c.cls == 'mfma':
            if D & set(c.srcab):
                n = max(n, 12 if big else 8)
            if D & set(c.srcc):
                if not (list(c.srcc) == list(p.writes) and c.op == p.op):
                    n = max(n, 10 if big else 6)
            elif D & cw:
                n = max(n, 10 if big else 6)
        elif D & (cr | cw):
            n = max(n, 12 if big else 8)
        if c.is_valu() and set(p.srcc) & cw:
            n = max(n, 7 if big else 3)
    if p.cls == 'salu' and 'm0' in pw and c.is_dma:
        n = max(n, 1)
    if p.cls == 'vmem' and p.wide_data and set(p.wide_data) & cw:
        n = max(n, 2)
    return n


class State:
    def __init__(s):
        s.vm = {}
        s.lg = {}
        s.vmreg = {}
        s.lgreg = {}
        s.windows = [[]]
        s.smem = False


class Prog:
    def __init__(s):
        s.out = []
        s.st = State()
        s.ntok = 0
        s.nops = 0
        s.nop_log = []
        s.count = 0
        s.labels = 0
        s.maxv = 0
        s.maxa = -1
        s.maxs = 0

    def raw(s, text):
        s.out.append(text)

    def comment(s, text):
        s.out.append('; ' + text)

    def _advance(s, ins, states=1):
        for w in s.st.windows:
            for e in w:
                e[1] += states
            w[:] = [e for e in w if e[1] < 21]
            if ins is not None:
                w.append([ins, 0])
        if len(s.st.windows) > 1:
            seen = {}
            for w in s.st.windows:
                seen.setdefault(tuple((e[0].text, e[1]) for e in w), w)
            s.st.windows = list(seen.values())

    def _emit_wait(s, vm=None, lg=None):
        parts = []
        if vm is not None:
            vm = min(vm, 63)
            parts.append('vmcnt(%d)' % vm)
            dead = [t for t, a in s.st.vm.items() if a >= vm]
            for t in dead:
                del s.st.vm[t]
            s.st.vmreg = {r: t for r, t in s.st.vmreg.items() if t in s.st.vm}
        if lg is not None:
            lg = min(lg, 15)
            parts.append('lgkmcnt(%d)' % lg)
            dead = [t for t, a in s.st.lg.items() if a >= lg]
            for t in dead:
                del s.st.lg[t]
            s.st.lgreg = {r: t for r, t in s.st.lgreg.items() if t in s.st.lg}
            if lg == 0:
                s.st.smem = False
        if parts:
            s.out.append('  s_waitcnt ' + ' '.join(parts))
            s.count += 1
            s._advance(None)

    def wait(s, vm=(), lg=()):
        if not isinstance(vm, (list, tuple, set)):
            vm = [vm]
        if not isinstance(lg, (list, tuple, set)):
            lg = [lg]
        a = [s.st.vm[t] for t in vm if t in s.st.vm]
        b = [s.st.lg[t] for t in lg if t in s.st.lg]
        nv = min(a) if a else None
        nl = min(b) if b else None
        if nl is not None and s.st.smem:
            nl = 0
        s._emit_wait(nv, nl)

    def wait_all(s, vm=False, lg=False):
        s._emit_wait(0 if vm else None, 0 if lg else None)

    def lg_drain(s):
        if s.st.lg or s.st.smem:
            s._emit_wait(None, 0)

    def __call__(s, text, tok=None):
        ins = Ins(text)
        for r in ins.reads + ins.writes:
            if r[0] == 'v' and r[1:].isdigit():
                s.maxv = max(s.maxv, int(r[1:]))
            if r[0] == 'a' and r[1:].isdigit():
                s.maxa = max(s.maxa, int(r[1:]))
            if r[0] == 's' and r[1:].isdigit():
                s.maxs = max(s.maxs, int(r[1:]))
        touched = set(ins.reads) | set(ins.writes)
        vt = [s.st.vmreg[r] for r in touched if r in s.st.vmreg]
        lt = [s.st.lgreg[r] for r in touched if r in s.st.lgreg]
        if vt or lt:
            s.wait(vm=vt, lg=lt)
        need = 0
        for w in s.st.windows:
            for p, d in w:
                need = max(need, need_states(p, ins) - d)
        if need > 0:
            s.nops += need
            s.nop_log.append((len(s.out), need, text))
            k = need
            while k > 0:
                m = min(k, 16)
                s.out.append('  s_nop %d' % (m - 1))
                s.count += 1
                k -= m
            s._advance(None, need)
        s.out.append('  ' + text)
        s.count += 1
        s._advance(ins)
        if ins.cls == 'vmem':
            if tok is None:
                s.ntok += 1
                tok = 'vm%d' % s.ntok
            for t in s.st.vm:
                s.st.vm[t] += 1
            s.st.vm[tok] = 0
            for r in ins.writes:
                s.st.vmreg[r] = tok
            return tok
        if ins.cls in ('ds', 'smem'):
            if tok is None:
                s.ntok += 1
                tok = 'lg%d' % s.ntok
            for t in s.st.lg:
                s.st.lg[t] += 1
            s.st.lg[tok] = 0
            if ins.cls == 'smem':
                s.st.smem = True
            for r in ins.writes:
                s.st.lgreg[r] = tok
            return tok
        return None

    def barrier(s):
        s.lg_drain()
        s('s_barrier')

    def label(s, name):
        s.out.append(name + ':')

    def newlabel(s, base='L'):
        s.labels += 1
        return '%s_%d' % (base, s.labels)

    def snapshot(s):
        return copy.deepcopy(s.st)

    def restore(s, st):
        s.st = copy.deepcopy(st)

    def merge(s, other):
        a, b = s.st, other
        for name in ('vm', 'lg'):
            da, db = getattr(a, name), getattr(b, name)
            for t, age in db.items():
                da[t] = min(da[t], age) if t in da else age
        for name in ('vmreg', 'lgreg'):
            da, db = getattr(a, name), getattr(b, name)
            dd = getattr(a, name[:2])
            for r, t in db.items():
                if r in da and da[r] != t:
                    if dd[t] < dd[da[r]]:
                        da[r] = t
                else:
                    da[r] = t
        a.windows += copy.deepcopy(b.windows)
        a.smem = a.smem or b.smem

    def run(s, items):
        for it in items:
            if isinstance(it, str):
                s(it)
            elif isinstance(it, tuple):
                s(it[0], tok=it[1])
            else:
                it()

    def text(s):
        return '\n'.join(s.out) + '\n'


def interleave(main, fill, per=None):
    out = []
    n, m = len(main), len(fill)
    j = 0
    for i, it in enumerate(main):
        out.append(it)
        tgt = (m * (i + 1)) // n if per is None else min(m, int(per * (i + 1)))
        while j < tgt:
            out.append(fill[j])
            j += 1
    out += fill[j:]
    return out


KNAME = 'recurrent_scan__linear_kernel_hedgehog__mixer_s_mlp__prompt_kernel'


def wrap(body, grid, block, lds, nv, na, ns, header=''):
    acc_off = ((nv + 3) // 4) * 4
    nfv = acc_off + na if na > 0 else nv
    o = header
    o += '; @launch grid=(%d,1,1) block=(%d,1,1) lds=%d\n' % (grid, block, lds)
    o += '.amdgcn_target "amdgcn-amd-amdhsa--gfx950"\n.text\n.globl %s\n.p2align 8\n.type %s,@function\n%s:\n' % (KNAME, KNAME, KNAME)
    o += body
    o += '.section .rodata,"a"\n.p2align 6\n.amdhsa_kernel %s\n' % KNAME
    o += '  .amdhsa_next_free_vgpr %d\n  .amdhsa_next_free_sgpr %d\n  .amdhsa_accum_offset %d\n' % (nfv, ns, acc_off)
    o += '  .amdhsa_group_segment_fixed_size 0\n  .amdhsa_kernarg_size 96\n  .amdhsa_user_sgpr_count 2\n'
    o += '  .amdhsa_user_sgpr_kernarg_segment_ptr 1\n  .amdhsa_system_sgpr_workgroup_id_x 1\n'
    o += '  .amdhsa_float_denorm_mode_32 3\n  .amdhsa_float_denorm_mode_16_64 3\n'
    o += '.end_amdhsa_kernel\n'
    return o
```

```python
import sys, os, struct
sys.path.insert(0, os.path.dirname(os.path.abspath(__file__)))
from dsl import *


def f2u(x):
    return struct.unpack('<I', struct.pack('<f', x))[0]


def hx(x):
    return '0x%08x' % (f2u(x))


MB = 1 << 20
WS_HS = 0
WS_X1 = 2 * MB
WS_O = 4 * MB
WS_H2 = 6 * MB
WS_KVP = 13 * MB
WS_SM = 17 * MB
WS_KVF = WS_SM
WS_ST1 = WS_SM + 0x10000
WS_F1 = WS_SM + 0x50000
WS_F2 = WS_F1 + 0x2000
WS_F3A = WS_F2 + 0x2000
WS_F3B = WS_F3A + 0x2000
WS_FO = WS_F3B + 0x2000
WS_FK = WS_FO + 0x2000
WS_FR = WS_FK + 0x1000
WS_EP = WS_FR + 0x1000
WS_FC = WS_EP + 0x1000
WS_CSP = WS_SM + 0x70000
WS_DBG = WS_SM + 0x60000
assert WS_FC + 0x2000 <= WS_DBG
WS_SIZE = WS_SM + 0x80000

NSLOT = 9
SLOT = 16384
M0_ = NSLOT * SLOT
M_PHI = M0_
M_SP = M_PHI + 4096
M_MEAN = M_SP + 1024
M_RSTD = M_MEAN + 256
M_CS = M_RSTD + 256
M_CSR = M_CS + 512
M_CSF = M_CSR + 5120
LDS_BYTES = 160 * 1024
assert M_CSF + 1280 <= LDS_BYTES

OOB = 0x80000000
LOG2E = 1.4426950408889634
GK0 = -2.0 * 0.7978845608028654 * LOG2E
GK1 = GK0 * 0.044715

S_X, S_QKV, S_PHI, S_WO, S_W1, S_W2, S_W3, S_W4, S_OUT, S_WS, S_WS4 = range(4, 48, 4)
srd = lambda b: 's[%d:%d]' % (b, b + 3)
(sM, sC, sW, sWL, sXB, sW1B, sQB, sW3B, sW4B, sTAG, sONE, sOFF, sT0, sT1, sT2, sCNT, sI4R, sC14, sMW, sNW) = ['s%d' % i for i in range(48, 68)]
sL2 = 's[68:69]'
sT3, sT4, sDL, sR32 = 's70', 's71', 's72', 's73'
sMSK = 's[74:75]'
sCN, sFI = 's3', 's2'
STAMP0 = 76

_v = [1]


def valloc(n, align=1):
    while _v[0] % align:
        _v[0] += 1
    b = _v[0]
    _v[0] += n
    return b


vL = valloc(1)
vL16 = valloc(1)
vTAG = valloc(1)
vDA = valloc(4)
vDB = valloc(4)
vDD = valloc(4)
vW32 = valloc(3)
vW3O = valloc(3)
vW4 = valloc(6)
vW5 = valloc(6)
vF0 = valloc(1)
vP = valloc(1)
vPA = valloc(1)
vXO = valloc(1)
vCQ = valloc(1)
vWPA = valloc(2)
vMEAN = valloc(2, 2)
vRSTD = valloc(2, 2)
vSEL = valloc(4, 4)
vXT = valloc(8, 2)
vX1K = valloc(8, 4)
vST = valloc(8, 4)
vCSA = valloc(4, 4)
NFB = 6
vFB = valloc(4 * NFB, 4)
vACC = valloc(64, 4)
vAK = valloc(16, 4)
vAV = valloc(16, 4)
vT = valloc(56, 4)
vDX, vXR, vDT = vAV, vAV + 4, vAV + 8
NV = _v[0]
assert NV <= 256, NV

v = lambda b, n=1: 'v%d' % b if n == 1 else 'v[%d:%d]' % (b, b + n - 1)
a = lambda b, n=1: 'a%d' % b if n == 1 else 'a[%d:%d]' % (b, b + n - 1)
M32 = 'v_mfma_f32_32x32x16_bf16'
M16 = 'v_mfma_f32_16x16x32_bf16'


class Chunk:
    def __init__(s, name, srd_, sbase, imm, vset, slot=None):
        s.name, s.srd, s.sbase, s.imm, s.vset, s.slot = name, srd_, sbase, imm, vset, slot
        s.tok = None
        s.issued = 0
        s.lastread = None


class Gen:
    def __init__(g, stop=99, stamps=False, burst=9, opt=None):
        g.p = Prog()
        g.stop = stop
        g.stamps = stamps
        g.nst = 0
        g.stnames = []
        g.allstamps = []
        g.burst = burst
        g.opt = opt or {}
        ch = []
        for j in range(4):
            ch.append(Chunk('X%d' % j, S_X, sXB, j * 256, vDX, slot=j))
            ch.append(Chunk('W1_%d' % j, S_W1, sW1B, j * 131072, vDA, slot=4 + j))
        ch.append(Chunk('CS', S_WS4, sT4, 0, vDT))
        for nm, off in (('K', 1024), ('V', 2048)):
            for j in range(4):
                ch.append(Chunk('%s%d' % (nm, j), S_QKV, sQB, off + j * 393216, vDB))
        for j in range(4):
            ch.append(Chunk('W2_%d' % j, S_W2, sW1B, j * 131072, vDA))
        for j in range(4):
            ch.append(Chunk('Q%d' % j, S_QKV, sQB, j * 393216, vDB))
        for j in range(8):
            ch.append(Chunk('W3_%d' % j, S_W3, sW3B, (j >> 2) * 128 + (j & 3) * 458752, vDD))
        for j in range(14):
            kb = 8 * j if j < 7 else 8 * (j - 7) + 2
            ch.append(Chunk('W4_%d' % j, S_W4, sW4B, kb * 32768, vDA))
        for j in range(4):
            ch.append(Chunk('WO_%d' % j, S_WO, sW1B, j * 131072, vDA))
        g.chunks = ch
        g.byname = {c.name: c for c in ch}
        g.nxt = 0
        g.free = list(range(NSLOT))
        g.pending_free = []
        g.pending_reads = []
        g.m0_dirty = True

    def can_dma(g):
        if g.nxt >= len(g.chunks):
            return False
        c = g.chunks[g.nxt]
        if c.issued > 0:
            return True
        if c.slot is not None:
            return c.slot in g.free
        return len(g.free) > 0

    def dma(g, n=1):
        p = g.p
        for _ in range(n):
            if not g.can_dma():
                return
            c = g.chunks[g.nxt]
            if c.issued == 0:
                if c.slot is None:
                    c.slot = g.free[0]
                g.free.remove(c.slot)
                p(f's_add_u32 {sOFF}, {c.sbase}, {c.imm}')
                g.m0_dirty = True
            if g.m0_dirty:
                p(f's_add_u32 m0, {sWL}, {c.slot * SLOT}')
                g.m0_dirty = False
            u = c.issued
            c.tok = p(f'buffer_load_dwordx4 {v(c.vset + u)}, {srd(c.srd)}, {sOFF} offen offset:{u * 1024} lds')
            c.issued += 1
            if c.issued == 4:
                g.nxt += 1

    def D(g, n=1):
        return lambda: g.dma(n)

    def finish_chunks(g, names):
        for nm in names:
            c = g.byname[nm]
            while c.issued < 4:
                assert g.can_dma(), ('no free slot for', nm, g.chunks[g.nxt].name)
                g.dma()

    def barrier(g, drain=True):
        if drain:
            g.p.barrier()
        else:
            g.p.wait(lg=g.pending_reads)
            g.p('s_barrier')
        g.free += g.pending_free
        g.pending_free = []
        g.pending_reads = []

    def acquire(g, names, drain=True):
        g.finish_chunks(names)
        g.p.wait(vm=[g.byname[n].tok for n in names])
        g.barrier(drain)

    def release(g, names):
        for n in names:
            g.pending_free.append(g.byname[n].slot)
            g.pending_reads.append(g.byname[n].lastread)

    def lds(g, name, vbase, off):
        s = g.byname[name].slot
        return '%s offset:%d' % (v(vbase + (s >> 2)), (s & 3) * SLOT + off)

    def trr(g, dst, name, vbase, off):
        def f():
            g.byname[name].lastread = g.p('ds_read_b64_tr_b16 %s, %s' % (v(dst, 2), g.lds(name, vbase, off)))
        return f

    def stamp(g, name):
        g.allstamps.append(name)
        if g.stamps and name in ('start', 'end'):
            k = STAMP0 + (22 if name == 'start' else 24)
            g.p.raw('  s_memtime s[%d:%d]' % (k, k + 1))
        if g.stamps and (g.nst < 10 or name == 'end') and (name in g.stamps or name in ('start', 'end')):
            g.p.raw('  %s s[%d:%d]' % ('s_memtime' if g.opt.get('cyc') else 's_memrealtime', STAMP0 + 2 * g.nst, STAMP0 + 2 * g.nst + 1))
            g.nst += 1
            g.stnames.append(name)

    def St(g, name):
        return lambda: g.stamp(name)

    def pipeline(g, steps, depth, shadow=None, frm=0, per=2):
        p = g.p
        n = len(steps)
        if shadow:
            shadow = list(shadow)
            i = frm
            while shadow:
                assert i < n, 'shadow does not fit'
                steps[i]['work'] += shadow[:per]
                del shadow[:per]
                i += 1
        for i in range(n + depth):
            if i < n:
                p.run(steps[i].get('pre', []))
                p.run(steps[i]['reads'])
            if i >= depth:
                p.run(steps[i - depth]['work'])

    def acq_step(g, chunks, ci, prev):
        def f():
            if ci == 0 and prev:
                g.release(prev)
            if ci >= 2:
                g.release([chunks[ci - 2]])
            g.stamp('pre ' + chunks[ci])
            g.acquire([chunks[ci]], drain=False)
            g.stamp('acq ' + chunks[ci])
        return f

    def publish(g, toks, base, sidx, ws=S_WS):
        p = g.p

        def f():
            si = sidx
            if callable(si):
                si()
                si = sT0
            p(f's_add_u32 {sT0}, {si}, {base}')
            p.wait(vm=toks)
            p(f'buffer_store_dword {v(vTAG)}, {v(vF0)}, {srd(ws)}, {sT0} offen sc1')
        return f

    def poll_issue(g):
        g.p(f'buffer_load_dword {v(vP)}, {v(vPA)}, {srd(S_WS)}, 0 offen sc1')

    def poll_check(g):
        p = g.p
        ok = p.newlabel('L_ok')
        lp = p.newlabel('L_spin')
        p(f'v_cmp_ne_u32 vcc, {v(vTAG)}, {v(vP)}')
        p('s_nop 0')
        p(f's_cbranch_vccz {ok}')
        st = p.snapshot()
        p(f's_mov_b32 {sCNT}, 200000')
        p.label(lp)
        p(f'buffer_load_dword {v(vP)}, {v(vPA)}, {srd(S_WS)}, 0 offen sc1')
        p.wait_all(vm=True)
        p(f'v_cmp_ne_u32 vcc, {v(vTAG)}, {v(vP)}')
        p('s_nop 0')
        p(f's_cbranch_vccz {ok}')
        p(f's_sub_u32 {sCNT}, {sCNT}, 1')
        p(f's_cbranch_scc0 {lp}')
        p.label(ok)
        p.merge(st)

    def line_poll_addr(g, base, srow, maxi=15):
        p = g.p
        p(f'v_and_b32 {v(vPA)}, 15, {v(vL)}')
        if maxi < 15:
            p(f'v_min_u32 {v(vPA)}, {maxi}, {v(vPA)}')
        p(f's_lshl_b32 {sT0}, {srow}, 7')
        p(f's_add_u32 {sT0}, {sT0}, {base}')
        p(f'v_lshl_add_u32 {v(vPA)}, {v(vPA)}, 2, {sT0}')

    def bf16r_i(g, d, s_):
        return [f'v_cvt_pk_bf16_f32 {d}, {s_}, {s_}', f'v_and_b32 {d}, 0xffff0000, {d}']

    def bf16r(g, d, s_):
        g.p.run(g.bf16r_i(d, s_))

    def ln_items(g, vsum, vsq, vmean, vrstd, t):
        return ([f'v_mul_f32 {vmean}, {hx(1.0 / 512)}, {vsum}', f'v_mul_f32 {vsq}, {hx(1.0 / 512)}, {vsq}',
                 f'v_fma_f32 {vsq}, -{vmean}, {vmean}, {vsq}', f'v_max_f32 {vsq}, 0, {vsq}'] + g.bf16r_i(vsq, vsq) +
                [f'v_add_f32 {t}, {hx(1e-5)}, {vsq}'] + g.bf16r_i(t, t) + [f'v_sqrt_f32 {vsum}, {t}'] + g.bf16r_i(vmean, vmean) +
                g.bf16r_i(vsum, vsum) + [f'v_rcp_f32 {vrstd}, {vsum}'])

    def ln_stats(g, *args):
        g.p.run(g.ln_items(*args))

    def gelu_items(g, acc, n, cs, vnm, vk0, vk1, vS, out, tmp):
        bc = lambda r: v(r, 2)
        groups = []
        for i in range(0, n, 2):
            A = v(acc + i, 2)
            T = tmp + (i & 6)
            TT = v(T, 2)
            groups.append([
                f'v_pk_fma_f32 {A}, {v(cs + i, 2)}, {bc(vnm)}, {A} op_sel_hi:[1,0,1]',
                f'v_pk_mul_f32 {TT}, {A}, {A}',
                f'v_pk_fma_f32 {TT}, {TT}, {bc(vk1)}, {bc(vk0)} op_sel_hi:[1,0,0]',
                f'v_pk_mul_f32 {TT}, {TT}, {A}',
                f'v_exp_f32 v{T}, v{T}', f'v_exp_f32 v{T + 1}, v{T + 1}',
                f'v_pk_fma_f32 {TT}, {TT}, {bc(vS)}, {bc(vS)} op_sel_hi:[1,0,0]',
                f'v_rcp_f32 v{T}, v{T}', f'v_rcp_f32 v{T + 1}, v{T + 1}',
                f'v_pk_mul_f32 {TT}, {TT}, {A}',
                f'v_cvt_pk_bf16_f32 v{out + i // 2}, v{T}, v{T + 1}'])
        res = []
        for i in range(0, len(groups), 4):
            blk = groups[i:i + 4]
            for q in range(len(blk[0])):
                for b in blk:
                    res.append(b[q])
        return res

    def sel_write(g, src, addr, off=0):
        p = g.p
        p('s_mov_b32 exec_lo, 0x00030003')
        p('s_mov_b32 exec_hi, 0x00030003')
        for s_, o in (src if isinstance(src, list) else [(src, off)]):
            p(f'ds_write_b128 {addr}, {v(s_, 4)} offset:{o}')
        p('s_mov_b64 exec, -1')

    def setup(g):
        p = g.p
        p('s_cmp_ge_u32 s2, 256')
        p('s_cbranch_scc1 L_end')
        for b, off in ((S_X, 0), (S_W1, 40), (S_QKV, 8), (S_PHI, 16), (S_WO, 24), (S_W2, 48), (S_W3, 56), (S_W4, 64), (S_OUT, 72), (S_WS, 88)):
            p(f's_load_dwordx2 s[{b}:{b + 1}], s[0:1], {off}')
        l = v(vL)
        r8, p16, t0, t1 = v(vT), v(vT + 1), v(vT + 2), v(vT + 3)
        p(f'v_lshrrev_b32 {t0}, 6, v0')
        p(f'v_and_b32 {l}, 63, v0')
        p(f'v_readfirstlane_b32 {sW}, {t0}')
        p(f's_and_b32 {sT0}, s2, 1')
        p(f's_lshr_b32 {sT1}, s2, 3')
        p(f's_bfe_u32 {sT2}, s2, 0x20001')
        p(f's_lshr_b32 {sT3}, {sT1}, 2')
        p(f's_lshl3_add_u32 {sM}, {sT2}, {sT3}')
        p(f's_add_u32 {sT3}, {sT1}, {g.opt.get("crot", 0)}')
        p(f's_and_b32 {sT3}, {sT3}, 3')
        p(f's_lshl2_add_u32 {sC}, {sT0}, {sT3}')
        p(f's_lshr_b32 {sMW}, {sW}, 1')
        p(f's_and_b32 {sNW}, {sW}, 1')
        p(f's_lshl_b32 {sWL}, {sW}, 12')
        p(f's_lshl1_add_u32 {sXB}, {sM}, {sNW}')
        p(f's_lshl_b32 {sXB}, {sXB}, 8')
        p(f's_add_u32 {sXB}, {sXB}, {sMW}')
        p(f's_lshl_b32 {sXB}, {sXB}, 7')
        p(f's_lshl_b32 {sW1B}, {sW}, 8')
        p(f's_add_u32 {sW1B}, {sW1B}, {sC}')
        p(f's_lshl_b32 {sW1B}, {sW1B}, 7')
        for b, n in ((S_X, 2048 * 1024), (S_W1, 512 * 1024)):
            p(f's_mov_b32 s{b + 2}, {n}')
            p(f's_mov_b32 s{b + 3}, 0x20000')
        p(f'v_lshrrev_b32 {r8}, 3, {l}')
        p(f'v_and_b32 {p16}, 7, {l}')
        p(f'v_lshrrev_b32 {t0}, 4, {l}')
        p(f'v_xor_b32 {t1}, {p16}, {t0}')
        p(f'v_lshlrev_b32 {t1}, 4, {t1}')
        p(f'v_lshl_add_u32 {v(vDX)}, {r8}, 10, {t1}')
        p(f'v_xor_b32 {v(vDX + 1)}, 64, {v(vDX)}')
        p(f'v_add_u32 {v(vDX + 1)}, {8192 - 1024}, {v(vDX + 1)}')
        p(f'v_add_u32 {v(vDX + 2)}, {2 * (8192 - 1024)}, {v(vDX)}')
        p(f'v_add_u32 {v(vDX + 3)}, {2 * (8192 - 1024)}, {v(vDX + 1)}')
        p(f'v_and_b32 {t1}, 1, {t0}')
        p(f'v_lshlrev_b32 {t1}, 2, {t1}')
        p(f'v_xor_b32 {t1}, {p16}, {t1}')
        p(f'v_lshlrev_b32 {t1}, 4, {t1}')
        p(f'v_lshl_add_u32 {v(vDA)}, {r8}, 10, {t1}')
        for u in range(1, 4):
            p(f'v_add_u32 {v(vDA + u)}, {u * (8192 - 1024)}, {v(vDA)}')
        p(f's_lshl2_add_u32 {sCNT}, {sT1}, {sW}')
        p.wait_all(lg=True)
        g.stamp('start')
        ta = g.opt.get('ta', 0)
        g.dma(ta)
        if g.opt.get('pa', 1):
            g.touch_a()
        g.dma(8 - ta)
        rest = []
        R = rest.append
        for b, n in ((S_QKV, 512 * 3072), (S_PHI, 32 * 512), (S_WO, 512 * 1024), (S_W2, 512 * 1024), (S_W4, 1792 * 1024), (S_OUT, 2048 * 1024), (S_WS, WS_SIZE)):
            R(f's_mov_b32 s{b + 2}, {n}')
            R(f's_mov_b32 s{b + 3}, 0x20000')
        R(f's_mov_b32 s{S_W3 + 2}, {512 * 3584}')
        R(f's_mov_b32 s{S_W3 + 3}, 0x20000')
        R(f's_mov_b32 s{S_WS4 + 3}, 0x20000')
        R(f'v_lshlrev_b32 {v(vL16)}, 4, {l}')
        R(f's_lshr_b32 {sT3}, {sT1}, 3')
        R(f's_lshl2_add_u32 {sI4R}, {sT2}, {sT3}')
        R(f's_lshl2_add_u32 {sI4R}, {sI4R}, {sW}')
        R(f's_mul_i32 {sC14}, {sT0}, 7')
        R(f's_and_b32 {sT4}, {sT1}, 7')
        R(f's_add_u32 {sC14}, {sC14}, {sT4}')
        R(lambda: (p(f's_cmp_eq_u32 {sT4}, 7'), p(f's_cselect_b32 s{S_W3 + 2}, 0, {512 * 3584}')))
        R(f's_lshl_b32 {sT1}, {sC}, 7')
        R(f's_mul_i32 {sQB}, {sW}, {32 * 3072}')
        R(f's_add_u32 {sQB}, {sQB}, {sT1}')
        R(f's_mul_i32 {sW3B}, {sW}, {32 * 3584}')
        R(f's_lshl_b32 {sT0}, {sC14}, 8')
        R(f's_add_u32 {sW3B}, {sW3B}, {sT0}')
        R(f's_lshl2_add_u32 {sW4B}, {sMW}, {sNW}')
        R(f's_lshl_b32 {sW4B}, {sW4B}, 15')
        R(f's_add_u32 {sW4B}, {sW4B}, {sT1}')
        R(f's_or_b32 {sTAG}, s2, {sW}')
        R(f's_lshl1_add_u32 {sR32}, {sM}, {sMW}')
        R(f's_lshl1_add_u32 {sCN}, {sC}, {sNW}')
        R(f's_lshl_b32 {sFI}, {sR32}, 5')
        R(f's_add_u32 {sFI}, {sFI}, {sCN}')
        R(f's_lshl_b32 {sFI}, {sFI}, 2')
        R(f'v_mul_u32_u24 {v(vDB)}, 3072, {r8}')
        R(f'v_add_u32 {v(vDB)}, {v(vDB)}, {t1}')
        R(f'v_mul_u32_u24 {v(vDD)}, 3584, {r8}')
        R(f'v_add_u32 {v(vDD)}, {v(vDD)}, {t1}')
        for u in range(1, 4):
            R(f'v_add_u32 {v(vDB + u)}, {u * (8 * 3072 - 1024)}, {v(vDB)}')
            R(f'v_add_u32 {v(vDD + u)}, {u * (8 * 3584 - 1024)}, {v(vDD)}')
        R(f's_mov_b32 {sONE}, 0x3f803f80')
        R(f's_mov_b32 s68, {hx(LOG2E)}')
        R(f's_mov_b32 s69, {hx(LOG2E)}')
        R(f'v_cmp_eq_u32 vcc, 0, {l}')
        R(f'v_mov_b32 {v(vF0)}, 0x{OOB:x}')
        R(f'v_mov_b32 {v(vPA)}, {WS_EP}')
        R(f'v_cndmask_b32 {v(vF0)}, {v(vF0)}, 0, vcc')
        R(g.poll_issue)
        tok, h, r, cc, t2 = v(vT + 4), v(vT + 5), v(vT + 6), v(vT + 7), v(vT + 8)
        R(f'v_and_b32 {tok}, 31, {l}')
        R(f'v_lshrrev_b32 {h}, 5, {l}')
        R(f'v_bfe_u32 {r}, {l}, 2, 2')
        R(f'v_and_b32 {cc}, 3, {l}')
        R(f'v_lshlrev_b32 {v(vCQ)}, 4, {h}')
        R(f'v_bfe_u32 {t1}, {tok}, 1, 3')
        R(f'v_xor_b32 {t1}, {t1}, {h}')
        R(f'v_lshlrev_b32 {t1}, 4, {t1}')
        R(f'v_lshl_add_u32 {t1}, {tok}, 7, {t1}')
        R(f's_xor_b32 {sT3}, {sMW}, {sNW}')
        R(f's_lshl_b32 {sT0}, {sT3}, 5')
        R(f'v_xor_b32 {t1}, {sT0}, {t1}')
        R(f's_lshl_b32 {sT0}, {sMW}, 12')
        R(f'v_add_u32 {v(vXR)}, {sT0}, {t1}')
        for kk in range(1, 4):
            R(f'v_xor_b32 {v(vXR + kk)}, {kk << 5}, {v(vXR)}')
        R(f'v_bfe_u32 {t1}, {l}, 4, 1')
        R(f'v_lshrrev_b32 {t2}, 1, {cc}')
        R(f'v_lshl_or_b32 {t1}, {t1}, 1, {t2}')
        R(f'v_lshrrev_b32 {t2}, 1, {r}')
        R(f'v_lshl_or_b32 {t1}, {t2}, 2, {t1}')
        R(f'v_lshlrev_b32 {t1}, 4, {t1}')
        R(f'v_and_b32 {t2}, 1, {cc}')
        R(f'v_lshl_add_u32 {t1}, {t2}, 3, {t1}')
        R(f'v_lshl_add_u32 {t2}, {h}, 3, {r}')
        R(f'v_lshl_add_u32 {v(vW32)}, {t2}, 7, {t1}')
        R(f's_lshl_b32 {sT0}, {sNW}, 6')
        R(f'v_xor_b32 {v(vW32)}, {sT0}, {v(vW32)}')
        R(f's_lshl_b32 {sT1}, {sT3}, 11')
        R(f'v_subrev_u32 {v(vW3O)}, {sT1}, {v(vW32)}')
        R(f'v_add_u32 {v(vW32)}, {sT1}, {v(vW32)}')
        R(f'v_lshl_add_u32 {t2}, {h}, 2, {r}')
        R(f'v_lshl_add_u32 {v(vW4)}, {t2}, 7, {t1}')
        R(f'v_xor_b32 {v(vW4 + 3)}, 64, {v(vW4)}')
        R(f'v_xor_b32 {v(vW5)}, {sT0}, {v(vW4)}')
        R(f's_lshl_b32 {sT1}, {sNW}, 13')
        R(f'v_add_u32 {v(vW5)}, {sT1}, {v(vW5)}')
        R(f'v_xor_b32 {v(vW5 + 3)}, 64, {v(vW5)}')
        for b in (vW32, vW3O, vW4, vW4 + 3, vW5, vW5 + 3):
            R(f'v_add_u32 {v(b + 1)}, 0x10000, {v(b)}')
            R(f'v_add_u32 {v(b + 2)}, 0x20000, {v(b)}')
        R(f'v_xor_b32 {t2}, {t0}, {l}')
        R(f'v_and_b32 {t2}, 1, {t2}')
        R(f'v_cmp_eq_u32 vcc, 0, {t2}')
        R(f'v_mov_b32 {t2}, {sONE}')
        for i in range(4):
            R(f'v_cndmask_b32 {v(vSEL + i)}, 0, {t2}, vcc')
        R(f'v_lshlrev_b32 {t1}, 3, {h}')
        R(f'v_lshl_add_u32 {t1}, {tok}, 10, {t1}')
        R(f's_lshl_b32 {sT0}, {sR32}, 9')
        R(f's_add_u32 {sT0}, {sT0}, {sCN}')
        R(f's_lshl_b32 {sT0}, {sT0}, 6')
        R(f'v_add_u32 {v(vXO)}, {sT0}, {t1}')
        R(f's_lshr_b32 {sT0}, {sC}, 2')
        R(f's_add_u32 {sDL}, {sT0}, 1')
        R(f's_sub_u32 {sT0}, 0, {sDL}')
        R(lambda: (p(f's_bitcmp1_b32 {sC}, 1'), p(f's_cselect_b32 {sDL}, {sT0}, {sDL}')))
        items = []
        i = 0
        while i < len(rest):
            it = rest[i]
            if isinstance(it, str) and it.startswith('s_cmp'):
                grp = rest[i:i + 3]
                items.append(lambda grp=grp: p.run(grp))
                i += 3
            else:
                items.append(it)
                i += 1
        nb = 8
        p.run(interleave(items, [g.D(1)] * (4 * nb - 8)))
        assert g.nxt == nb and g.chunks[g.nxt].issued == 0
        p(f'v_cmp_gt_u32 vcc, 32, {l}')
        p(f'v_mov_b32 {t1}, 0x{OOB:x}')
        p(f's_lshl2_add_u32 {sT0}, {sC}, {sW}')
        p(f's_lshl_b32 {sT0}, {sT0}, 9')
        p(f'v_cndmask_b32 {t1}, {t1}, {v(vL16)}, vcc')
        p(f's_lshl_b32 {sT1}, {sW}, 10')
        p(f's_add_u32 m0, {sT1}, {M_PHI}')
        p('s_nop 0')
        g.tok_phi = p(f'buffer_load_dwordx4 {t1}, {srd(S_PHI)}, {sT0} offen lds')
        for q in range(4):
            p(f'buffer_load_dwordx2 {v(vXT + 2 * q, 2)}, {v(vXO)}, {srd(S_X)}, 0 offen offset:{16 * q}')
        if g.opt.get('pb', 0) == 1:
            g.touch_b()
        if g.opt.get('pc', 0) == 1:
            g.touch_c()
        p(f's_lshl3_add_u32 {sT0}, {sM}, {sC}')
        p(f's_lshr_b32 {sT1}, {sT0}, 2')
        p(f's_and_b32 {sT2}, {sT0}, 3')
        p(f's_lshl2_add_u32 {sT2}, {sT2}, {sW}')
        p(f's_cmp_lt_u32 {sT1}, 24')
        p('s_cselect_b64 vcc, -1, 0')
        p(f's_cselect_b32 s{S_WS4}, s{S_QKV}, s{S_W3}')
        p(f's_cselect_b32 s{S_WS4 + 1}, s{S_QKV + 1}, s{S_W3 + 1}')
        p(f's_cselect_b32 {sT3}, 6, 7')
        p(f's_cselect_b32 {sT4}, 0, 24')
        for u in range(4):
            p(f'v_cndmask_b32 {v(vDT + u)}, {v(vDD + u)}, {v(vDB + u)}, vcc')
        p(f's_cmp_lt_u32 {sT1}, 52')
        p('s_cselect_b64 vcc, -1, 0')
        p(f's_cselect_b32 s{S_WS4}, s{S_WS4}, s{S_W2}')
        p(f's_cselect_b32 s{S_WS4 + 1}, s{S_WS4 + 1}, s{S_W2 + 1}')
        p(f's_cselect_b32 {sT3}, {sT3}, 2')
        p(f's_cselect_b32 {sT4}, {sT4}, 52')
        for u in range(4):
            p(f'v_cndmask_b32 {v(vDT + u)}, {v(vDA + u)}, {v(vDT + u)}, vcc')
        p(f's_lshl_b32 s{S_WS4 + 2}, {sT3}, 18')
        p(f's_lshl_b32 {sT3}, {sT3}, 14')
        p(f's_sub_u32 {sT1}, {sT1}, {sT4}')
        p(f's_mul_i32 {sT4}, {sT2}, {sT3}')
        p(f's_lshl_b32 {sT1}, {sT1}, 7')
        p(f's_add_u32 {sT4}, {sT4}, {sT1}')
        p(f's_cmp_lt_u32 {sT0}, 240')
        p(f's_cselect_b32 s{S_WS4 + 2}, s{S_WS4 + 2}, 0')
        g.m0_dirty = True
        g.dma(4)
        p(f's_mov_b32 s{S_WS4}, s{S_WS}')
        p(f's_mov_b32 s{S_WS4 + 1}, s{S_WS + 1}')
        p(f's_cmp_eq_u32 s{S_W3 + 2}, 0')
        p(f's_cselect_b32 s{S_WS4 + 2}, 0, {WS_SIZE}')
        if g.opt.get('ts1', 1):
            g.touch_s(1)
        g.stamp('burst issued')

    def touch(g, sr, lines_per_row_log2, nlanes, pitch, sbase, d, full=None):
        p = g.p
        i, r = v(d), v(d + 1)
        p(f's_mul_i32 {sT4}, {sCNT}, {nlanes}')
        p(f'v_add_u32 {i}, {sT4}, {v(vL)}')
        if full:
            p(f'v_mul_u32_u24 {r}, {(1 << 20) // full + 1}, {i}')
            p(f'v_lshrrev_b32 {r}, 20, {r}')
            p(f'v_mul_u32_u24 {v(d + 2)}, {full}, {r}')
            p(f'v_sub_u32 {i}, {i}, {v(d + 2)}')
        else:
            p(f'v_lshrrev_b32 {r}, {lines_per_row_log2}, {i}')
            p(f'v_and_b32 {i}, {(1 << lines_per_row_log2) - 1}, {i}')
        p(f'v_mul_u32_u24 {r}, {pitch}, {r}')
        p(f'v_lshl_add_u32 {i}, {i}, 7, {r}')
        if nlanes < 64:
            p(f's_mov_b64 exec, {hex((1 << nlanes) - 1) if nlanes <= 32 else -1}')
            if nlanes > 32:
                p(f's_mov_b32 exec_hi, {hex((1 << (nlanes - 32)) - 1)}')
        p(f'buffer_load_dword {r}, {i}, {srd(sr)}, {sbase} offen')
        p.st.vmreg.pop('v%d' % (d + 1), None)
        if nlanes < 64:
            p('s_mov_b64 exec, -1')

    def touch_g(g):
        p = g.p
        d = v(vT + 52)
        ad = v(vT + 53)
        p(f'v_lshlrev_b32 {ad}, 7, {v(vL)}')
        p(f's_lshl3_add_u32 {sT0}, {sM}, {sC}')
        p(f's_lshl2_add_u32 {sT0}, {sT0}, {sW}')
        p(f's_mul_i32 {sT1}, {sT0}, {14 * 128}')
        p(f's_lshl_b32 {sT0}, {sT0}, 9')
        p('s_mov_b64 exec, 0x3fff')
        p(f'buffer_load_dword {d}, {ad}, {srd(S_W4)}, {sT1} offen')
        p.st.vmreg.pop('v%d' % (vT + 52), None)
        p('s_mov_b64 exec, 15')
        p(f'buffer_load_dword {d}, {ad}, {srd(S_WO)}, {sT0} offen')
        p.st.vmreg.pop('v%d' % (vT + 52), None)
        p('s_mov_b64 exec, -1')

    def touch_s(g, which):
        p = g.p
        d, ad = v(vT + 54), v(vT + 55)
        wi = sT1
        p(f's_and_b32 {wi}, {sM}, 7')
        p(f's_and_b32 {sT0}, {sC}, 3')
        p(f's_lshl2_add_u32 {wi}, {wi}, {sT0}')
        p(f's_lshl2_add_u32 {wi}, {wi}, {sW}')
        p(f's_or_b32 {sT0}, {sC}, 3')
        p(f's_lshl_b32 {sT0}, {sT0}, 7')
        if which == 1:
            p(f'v_lshrrev_b32 {d}, 2, {v(vL)}')
            p(f'v_and_b32 {ad}, 3, {v(vL)}')
            p(f'v_mul_u32_u24 {ad}, 3072, {ad}')
            p(f'v_lshl_add_u32 {ad}, {d}, 10, {ad}')
            p(f's_mul_i32 {sT2}, {wi}, {4 * 3072}')
            p(f's_add_u32 {sT2}, {sT2}, {sT0}')
            p('s_mov_b64 exec, 0xfff')
            p(f'buffer_load_dword {d}, {ad}, {srd(S_QKV)}, {sT2} offen')
            p.st.vmreg.pop('v%d' % (vT + 54), None)
            p('s_mov_b64 exec, 15')
            p(f'v_lshlrev_b32 {ad}, 10, {v(vL)}')
            p(f's_lshl_b32 {sT2}, {wi}, 12')
            p(f's_add_u32 {sT2}, {sT2}, {sT0}')
            p(f'buffer_load_dword {d}, {ad}, {srd(S_W2)}, {sT2} offen')
        else:
            p(f'v_lshlrev_b32 {ad}, 10, {v(vL)}')
            p(f's_mul_i32 {sT2}, {wi}, {14 * 1024}')
            p(f's_add_u32 {sT2}, {sT2}, {sT0}')
            p('s_mov_b64 exec, 0x3fff')
            p(f'buffer_load_dword {d}, {ad}, {srd(S_W4)}, {sT2} offen')
            p.st.vmreg.pop('v%d' % (vT + 54), None)
            p('s_mov_b64 exec, 15')
            p(f's_lshl_b32 {sT2}, {wi}, 12')
            p(f's_add_u32 {sT2}, {sT2}, {sT0}')
            p(f'buffer_load_dword {d}, {ad}, {srd(S_WO)}, {sT2} offen')
        p.st.vmreg.pop('v%d' % (vT + 54), None)
        p('s_mov_b64 exec, -1')

    def touch_a(g):
        p = g.p
        p(f's_lshl_b32 {sT3}, {sT2}, 19')
        p(f's_add_u32 {sT3}, {sT3}, 512')
        g.touch(S_X, 2, 16, 1024, sT3, vT + 40)
        p(f's_lshl_b32 {sT3}, {sT0}, 9')
        p(f's_add_u32 {sT3}, {sT3}, {256 * 1024}')
        g.touch(S_W1, 2, 8, 1024, sT3, vT + 43)

    def touch_b(g):
        p = g.p
        hf = sT3
        p(f's_lshr_b32 {hf}, {sC}, 2')
        p(f's_lshl_b32 {hf}, {hf}, 9')
        p(f's_add_u32 {sT0}, {hf}, 1024')
        g.touch(S_QKV, 2, 16, 3072, sT0, vT + 40)
        p(f's_add_u32 {sT0}, {hf}, 2048')
        g.touch(S_QKV, 2, 16, 3072, sT0, vT + 43)
        g.touch(S_W2, 2, 16, 1024, hf, vT + 46)
        p(f's_mov_b32 s{S_PHI}, s{S_W3}')
        p(f's_mov_b32 s{S_PHI + 1}, s{S_W3 + 1}')
        p(f's_mov_b32 s{S_PHI + 2}, {512 * 3584}')
        p(f's_mul_i32 {sT0}, {hf}, 7')
        p(f's_lshr_b32 {sT0}, {sT0}, 1')
        g.touch(S_PHI, 0, 56, 3584, sT0, vT + 49, full=14)
        p(f'v_lshlrev_b32 {v(vT + 52)}, 20, {v(vL)}')
        p(f'buffer_load_dword {v(vT + 53)}, {v(vT + 52)}, {srd(S_WS)}, 0 offen')
        p(f'buffer_load_dword {v(vT + 54)}, {v(vT + 52)}, {srd(S_OUT)}, 0 offen')
        p.st.vmreg.pop('v%d' % (vT + 53), None)
        p.st.vmreg.pop('v%d' % (vT + 54), None)

    def touch_c(g):
        p = g.p
        hf = sT3
        p(f's_lshr_b32 {hf}, {sC}, 2')
        p(f's_lshl_b32 {hf}, {hf}, 9')
        g.touch(S_QKV, 2, 16, 3072, hf, vT + 40)
        g.touch(S_W4, 2, 56, 1024, hf, vT + 43)
        g.touch(S_WO, 2, 16, 1024, hf, vT + 46)

    def g2(g):
        p = g.p
        accH, accG, accS = vACC, vACC + 16, vACC + 32
        steps = []
        for ks in range(32):
            j, k8 = ks >> 3, ks & 7
            fb = vFB + 4 * (ks % NFB)
            st = dict(pre=[], reads=[], work=[])
            if k8 == 0:
                def acq(j=j):
                    if j > 0:
                        g.release(['X%d' % (j - 1), 'W1_%d' % (j - 1)])
                    g.acquire(['X%d' % j, 'W1_%d' % j], drain=False)
                    g.stamp('first data' if j == 0 else 'g2c%d' % j)
                st['pre'].append(acq)
            xo = j * SLOT + (k8 >> 2) * 8192
            st['reads'].append(f'ds_read_b128 {a(4 * ks, 4)}, {v(vXR + (k8 & 3))} offset:{xo}')
            for q in range(2):
                st['reads'].append(g.trr(fb + 2 * q, 'W1_%d' % j, vW3O if ks & 1 else vW32, k8 * 2048 + q * 512))
            z = lambda r, n: '0' if ks == 0 else v(r, n)
            st['work'].append(f'{M32} {v(accH, 16)}, {v(fb, 4)}, {a(4 * ks, 4)}, {z(accH, 16)}')
            if k8 & 1 == 0:
                st['work'].append(f'{M16} {v(accS, 4)}, {a(4 * ks, 4)}, {v(vSEL, 4)}, {z(accS, 4)}')
                st['work'].append(f'{M16} {v(vCSA, 4)}, {v(fb, 4)}, {v(vSEL, 4)}, {z(vCSA, 4)}')
            else:
                st['work'].append(f'{M32} {v(accG, 16)}, {a(4 * ks - 4, 4)}, {a(4 * ks - 4, 4)}, {"0" if ks == 1 else v(accG, 16)}')
            if ks >= g.opt.get('g2from', 8) and ks % g.opt.get('g2every', 2) == 0:
                st['work'].append(g.D(1))
            steps.append(st)
        t1, t2, tp, ad, zad, oob, sa = [v(vT + i) for i in range(7)]

        def hs_addr(dst, tok, tmp):
            return [f'v_lshrrev_b32 {tmp}, 5, {tok}', f'v_and_b32 {dst}, 31, {tok}', f'v_lshl_add_u32 {dst}, {v(vCQ)}, 1, {dst}',
                    f'v_lshlrev_b32 {dst}, 4, {dst}', f'v_lshl_add_u32 {dst}, {tmp}, 15, {dst}']
        prep = [f'v_and_b32 {tp}, 31, {v(vL)}',
                lambda: (p(f's_lshl_b32 {sT0}, {sMW}, 7'), p(f's_add_u32 {sT0}, {sT0}, {M_SP}'), p(f'v_lshl_add_u32 {t1}, {tp}, 2, {sT0}')),
                lambda: (p(f's_lshl_b32 {sT0}, {sNW}, 9'), p(f'v_add_u32 {t2}, {sT0}, {t1}')),
                lambda: (p(f's_lshl_b32 {sT0}, {sR32}, 5'), p(f'v_add_u32 {zad}, {sT0}, {tp}')),
                f'v_add_u32 {tp}, {sDL}, {zad}'] + hs_addr(ad, tp, oob) + [
                f'v_cmp_gt_u32 vcc, 2048, {tp}', f'v_mov_b32 {oob}, 0x{OOB:x}', f'v_and_b32 {sa}, 48, {v(vL)}',
                f'v_cndmask_b32 {ad}, {oob}, {ad}, vcc', f'v_and_b32 {v(vT + 7)}, 1, {v(vL)}', f'v_lshl_add_u32 {sa}, {v(vT + 7)}, 6, {sa}',
                lambda: (p(f's_lshl_b32 {sT0}, {sW}, 7'), p(f's_add_u32 {sT0}, {sT0}, {M_CS}'), p(f'v_add_u32 {v(vT + 7)}, {sT0}, {sa}')),
                lambda: (p(f's_lshl_b32 {sT0}, {sNW}, 2'), p(f's_add_u32 {sT0}, {sT0}, {sMW}'), p(f's_lshl_b32 {sT0}, {sT0}, 7'),
                         p(f's_add_u32 {sT0}, {sT0}, {M_SP}'), p(f'v_add_u32 {sa}, {sT0}, {sa}')),
                lambda: (p(f's_lshl_b32 {sT0}, {sNW}, 7'), p(f's_add_u32 {sT0}, {sT0}, {M_CS}'), p(f'v_add_u32 {v(vT + 8)}, {sT0}, {v(vCQ)}')),
                lambda: (p(f'v_readfirstlane_b32 {sT0}, {v(vP)}'), p(f's_mul_i32 {sT0}, {sT0}, 1664525'), p(f's_add_u32 {sT0}, {sT0}, 1013904223'),
                         p(f'v_mov_b32 {v(vTAG)}, {sT0}'))]
        for i, it in enumerate(prep):
            steps[8 + i]['work'].append(it)
        g.pipeline(steps, 3)
        g.stamp('g2 mfma done')
        G = accG
        for mask, step in ((0xaaaaaaaa, 1), (0xcccccccc, 2), (0xff00ff00, 4), (0xffff0000, 8)):
            p(f's_mov_b32 s74, 0x{mask:x}')
            p(f's_mov_b32 s75, 0x{mask:x}')
            for i in range(0, 16, 2 * step):
                p(f'v_cndmask_b32 {v(G + i)}, {v(G + i)}, {v(G + i + step)}, {sMSK}')
        p('s_mov_b32 exec_lo, 0x0f0f0f0f')
        p('s_mov_b32 exec_hi, 0xf0f0f0f0')
        p(f'ds_write_b32 {t2}, {v(G)} offset:256')
        p('s_mov_b32 exec_lo, 0x00030003')
        p('s_mov_b32 exec_hi, 0x00030003')
        p(f'ds_write_b128 {sa}, {v(accS, 4)}')
        p(f'ds_write_b128 {v(vT + 7)}, {v(vCSA, 4)}')
        p('s_mov_b64 exec, -1')
        g.release(['X3', 'W1_3'])
        g.acquire(['CS'])
        s0, s1, q0, q1 = [v(vST + i) for i in range(4)]
        p(f'ds_read2st64_b32 {v(vST, 2)}, {t1} offset0:0 offset1:2')
        p(f'ds_read2st64_b32 {v(vST + 2, 2)}, {t1} offset0:1 offset1:3')
        CS = vACC + 16
        for q in range(4):
            p(f'ds_read_b128 {v(CS + 4 * q, 4)}, {v(vT + 8)} offset:{32 * q}')
            p(f'ds_read_b128 {v(CS + 16 + 4 * q, 4)}, {v(vT + 8)} offset:{256 + 32 * q}')
        p(f's_lshl_b32 {sT2}, {sCN}, 11')
        p(f'v_add_f32 {s0}, {s0}, {s1}')
        p(f'v_add_f32 {q0}, {q0}, {q1}')
        g.ln_stats(s0, q0, v(vMEAN), v(vRSTD), s1)
        g.dma(1)
        p(f'ds_write_b32 {t1}, {v(vMEAN)} offset:{M_MEAN - M_SP}')
        p(f'ds_write_b32 {t1}, {v(vRSTD)} offset:{M_RSTD - M_SP}')
        k0, k1, S = vT + 8, vT + 10, vT + 12
        p(f'v_mul_f32 {q0}, {q0}, {v(vRSTD)}')
        p(f'v_mul_f32 {q0}, {q0}, {v(vRSTD)}')
        g.bf16r(q0, q0)
        p(f'v_add_f32 {q0}, {hx(1e-5)}, {q0}')
        g.bf16r(q0, q0)
        p(f'v_sqrt_f32 {q0}, {q0}')
        p(f'v_sub_f32 {v(vMEAN)}, 0, {v(vMEAN)}')
        g.bf16r(q0, q0)
        p(f'v_mul_f32 {v(S)}, {s0}, {q0}')
        p(f'v_rcp_f32 {q1}, {v(S)}')
        for i in range(0, 16, 2):
            p(f'v_pk_add_f32 {v(CS + i, 2)}, {v(CS + i, 2)}, {v(CS + 16 + i, 2)}')
        p(f'v_mul_f32 {v(k0)}, {hx(GK0)}, {q1}')
        p(f'v_mul_f32 {v(k1)}, {q1}, {q1}')
        p(f'v_mul_f32 {v(k1)}, {v(k1)}, {q1}')
        p(f'v_mul_f32 {v(k1)}, {hx(GK1)}, {v(k1)}')
        out = vT + 16
        items = g.gelu_items(accH, 16, CS, vMEAN, k0, k1, S, out, vT + 24)
        half = len(items) // 2
        p.run(interleave(items[:half], [g.D(1)] * g.opt.get('hdma', 4)))
        toks = [p(f'buffer_store_dwordx4 {v(out, 4)}, {ad}, {srd(S_WS)}, {sT2} offen sc1')]
        p.run(interleave(items[half:], [g.D(1)] * g.opt.get('hdma', 4)))
        toks.append(p(f'buffer_store_dwordx4 {v(out + 4, 4)}, {ad}, {srd(S_WS)}, {sT2} offen offset:1024 sc1'))
        skip = p.newlabel('L_nz')
        p(f's_add_u32 {sT0}, {sM}, 1')
        p(f's_and_b32 {sT0}, {sT0}, 30')
        p(f's_cbranch_scc1 {skip}')
        st = p.snapshot()
        p(f'v_subrev_u32 {tp}, {sDL}, {zad}')
        p.run(hs_addr(ad, zad, t2))
        p(f'v_cmp_lt_u32 vcc, 2047, {tp}')
        for i in range(4):
            p(f'v_mov_b32 {v(vT + 24 + i)}, 0')
        p(f'v_cndmask_b32 {ad}, {oob}, {ad}, vcc')
        toks.append(p(f'buffer_store_dwordx4 {v(vT + 24, 4)}, {ad}, {srd(S_WS)}, {sT2} offen sc1'))
        toks.append(p(f'buffer_store_dwordx4 {v(vT + 24, 4)}, {ad}, {srd(S_WS)}, {sT2} offen offset:1024 sc1'))
        p.label(skip)
        p.merge(st)
        g.stamp('h stored')
        return g.publish(toks, WS_F1, sFI)

    def qkv_tile(g, nm, acc, transposed, extra=None, prev=None, dma_every=2, pre=None, shadow=None, frm=0):
        extra = extra or {}
        steps = []
        names = ['%s%d' % (nm, j) for j in range(4)]
        for ks in range(32):
            j, k8 = ks >> 3, ks & 7
            fb = vFB + 4 * (ks % NFB)
            st = dict(pre=list((pre or {}).get(ks, [])), reads=[], work=[])
            if k8 == 0:
                st['pre'].append(g.acq_step(names, j, prev))
            for q in range(2):
                st['reads'].append(g.trr(fb + 2 * q, names[j], vW3O if ks & 1 else vW32, k8 * 2048 + q * 512))
            A, B = (v(fb, 4), a(4 * ks, 4)) if transposed else (a(4 * ks, 4), v(fb, 4))
            st['work'].append(f'{M32} {v(acc, 16)}, {A}, {B}, {"0" if ks == 0 else v(acc, 16)}')
            if ks % dma_every == dma_every - 1:
                st['work'].append(g.D(1))
            if ks in extra:
                st['work'] += extra[ks]
            steps.append(st)
        g.pipeline(steps, 4, shadow, frm)
        g.release(names[2:])

    def cs_produce(g):
        p = g.p
        T = vT
        ad, t, ONE, D = v(T), v(T + 1), T + 4, T + 8
        p(f'v_bfe_u32 {ad}, {v(vL)}, 2, 2')
        p(f'v_lshrrev_b32 {t}, 4, {v(vL)}')
        p(f'v_lshl_add_u32 {ad}, {t}, 3, {ad}')
        p(f'v_lshlrev_b32 {ad}, 7, {ad}')
        p(f'v_and_b32 {t}, 3, {v(vL)}')
        p(f'v_lshl_add_u32 {ad}, {t}, 3, {ad}')
        p(f'v_and_b32 {t}, 8, {v(vL)}')
        p(f's_lshl_b32 {sT0}, {sW}, 5')
        p(f'v_lshlrev_b32 {t}, 3, {t}')
        p(f'v_xor_b32 {t}, {sT0}, {t}')
        p(f's_mov_b32 {sT0}, {g.byname["CS"].slot * SLOT}')
        p(f'v_add3_u32 {ad}, {ad}, {t}, {sT0}')
        for j in range(4):
            for q in range(2):
                g.byname['CS'].lastread = p(f'ds_read_b64_tr_b16 {v(vFB + 4 * j + 2 * q, 2)}, {ad} offset:{j * 4096 + q * 512}')
        for i in range(4):
            p(f'v_mov_b32 {v(ONE + i)}, {sONE}')
        p(f'v_and_b32 {t}, 15, {v(vL)}')
        p(f'v_cmp_eq_u32 vcc, 0, {t}')
        p(f'v_mov_b32 {t}, 0x{OOB:x}')
        p(f's_lshl3_add_u32 {sT1}, {sM}, {sC}')
        p(f'v_cndmask_b32 {t}, {t}, {v(vL)}, vcc')
        p(f's_lshl2_add_u32 {sT2}, {sT1}, {sW}')
        p(f's_lshl_b32 {sT2}, {sT2}, 6')
        p(f's_add_u32 {sT2}, {sT2}, {WS_CSP}')
        for j in range(4):
            p(f'{M16} {v(D, 4)}, {v(vFB + 4 * j, 4)}, {v(ONE, 4)}, {"0" if j == 0 else v(D, 4)}')
        g.release(['CS'])
        box = []

        def store():
            box.append(p(f'buffer_store_dwordx4 {v(D, 4)}, {t}, {srd(S_WS)}, {sT2} offen sc1'))

        def pub():
            p(f's_lshl3_add_u32 {sT0}, {sM}, {sC}')
            p(f's_and_b32 {sT1}, {sT0}, 3')
            p(f's_lshr_b32 {sT0}, {sT0}, 2')
            p(f's_lshl_b32 {sT0}, {sT0}, 5')
            p(f's_add_u32 {sT0}, {sT0}, {sT1}')
            p(f's_lshl_b32 {sT0}, {sT0}, 2')
            p(f's_add_u32 {sT0}, {sT0}, {WS_FC}')
            g.w0_only(f'buffer_store_dword {v(vTAG)}, {v(vF0)}, {srd(S_WS)}, {sT0} offen sc1')
        return store, (lambda: p.wait(vm=box)), pub

    def cs_poll_addr(g):
        p = g.p
        t = v(vP)
        p(f's_min_u32 {sT0}, {sC14}, 13')
        p(f's_lshl_b32 {sT0}, {sT0}, 1')
        p(f's_add_u32 {sT0}, {sT0}, 24')
        p(f'v_min_u32 {v(vPA)}, 19, {v(vL)}')
        p(f'v_lshrrev_b32 {t}, 2, {v(vPA)}')
        p(f'v_cmp_gt_u32 vcc, 3, {t}')
        p(f'v_lshl_add_u32 {v(vT + 50)}, {t}, 3, {sC}')
        p(f'v_add_u32 {t}, {sT0}, {t}')
        p(f'v_subrev_u32 {t}, 3, {t}')
        p(f'v_cndmask_b32 {t}, {t}, {v(vT + 50)}, vcc')
        p(f'v_and_b32 {v(vPA)}, 3, {v(vPA)}')
        p(f'v_lshl_add_u32 {v(vPA)}, {t}, 5, {v(vPA)}')
        p(f'v_lshlrev_b32 {v(vPA)}, 2, {v(vPA)}')
        p(f'v_add_u32 {v(vPA)}, {WS_FC}, {v(vPA)}')

    def cs_fetch(g):
        p = g.p
        g.poll_check()
        p(f's_min_u32 {sT0}, {sC14}, 13')
        p(f's_lshl1_add_u32 {sT0}, {sT0}, 24')
        p(f's_lshl3_add_u32 {sT1}, {sW}, {sC}')
        p(f's_cmp_eq_u32 {sW}, 3')
        p(f's_cselect_b32 {sT1}, {sT0}, {sT1}')
        p(f's_lshl_b32 {sT1}, {sT1}, 10')
        p(f's_add_u32 {sT1}, {sT1}, {WS_CSP}')
        p(f's_lshl_b32 {sT2}, {sW}, 10')
        p(f's_add_u32 m0, {sT2}, {M_CSR}')
        p(f's_lshl_b32 {sT0}, {sT0}, 10')
        t1 = p(f'buffer_load_dwordx4 {v(vL16)}, {srd(S_WS)}, {sT1} offen sc1 lds')
        p(f's_add_u32 {sT0}, {sT0}, {WS_CSP + 1024}')
        p(f's_mov_b32 m0, {M_CSR + 4096}')
        skip = p.newlabel('L_cs')
        p(f's_cmp_eq_u32 {sW}, 0')
        p(f's_cbranch_scc0 {skip}')
        st = p.snapshot()
        t2 = p(f'buffer_load_dwordx4 {v(vL16)}, {srd(S_WS)}, {sT0} offen sc1 lds')
        p.label(skip)
        p.merge(st)
        g.m0_dirty = True
        g.cs_toks = [t1, t2]

    def cs_reduce(g):
        p = g.p
        T = vT + 40
        p.wait(vm=g.cs_toks)
        p(f's_lshl_b32 {sT0}, {sW}, 10')
        p(f's_add_u32 {sT0}, {sT0}, {M_CSR}')
        p(f'v_lshl_add_u32 {v(T)}, {v(vL)}, 2, {sT0}')
        p(f'v_lshlrev_b32 {v(T + 1)}, 2, {v(vL)}')
        p(f'v_add_u32 {v(T + 1)}, {M_CSR + 4096}, {v(T + 1)}')
        p(f'ds_read2st64_b32 {v(T + 2, 2)}, {v(T)} offset0:0 offset1:1')
        p(f'ds_read2st64_b32 {v(T + 4, 2)}, {v(T)} offset0:2 offset1:3')
        p(f'ds_read2st64_b32 {v(T + 6, 2)}, {v(T + 1)} offset0:0 offset1:1')
        p(f'ds_read2st64_b32 {v(T + 8, 2)}, {v(T + 1)} offset0:2 offset1:3')
        p(f's_mul_i32 {sT0}, {sW}, {256 - 1024}')
        p(f's_add_u32 {sT0}, {sT0}, {M_CSF - M_CSR}')
        p(f'v_add_u32 {v(T)}, {sT0}, {v(T)}')
        return [f'v_add_f32 {v(T + 2)}, {v(T + 2)}, {v(T + 3)}', f'v_add_f32 {v(T + 4)}, {v(T + 4)}, {v(T + 5)}',
                f'v_add_f32 {v(T + 6)}, {v(T + 6)}, {v(T + 7)}', f'v_add_f32 {v(T + 8)}, {v(T + 8)}, {v(T + 9)}',
                f'v_add_f32 {v(T + 2)}, {v(T + 2)}, {v(T + 4)}', f'v_add_f32 {v(T + 6)}, {v(T + 6)}, {v(T + 8)}',
                f'ds_write_b32 {v(T)}, {v(T + 2)}',
                lambda: g.w0_only(f'ds_write_b32 {v(T + 1)}, {v(T + 6)} offset:{M_CSF + 1024 - M_CSR - 4096}')]

    def w0_only(g, ins):
        p = g.p
        skip = p.newlabel('L_w0')
        p(f's_cmp_eq_u32 {sW}, 0')
        p(f's_cbranch_scc0 {skip}')
        st = p.snapshot()
        p(ins)
        p.label(skip)
        p.merge(st)

    def cs_read(g, strip, dst, tmp):
        p = g.p
        p(f's_lshl_b32 {sT0}, {sNW}, 7')
        p(f's_add_u32 {sT0}, {sT0}, {M_CSF + strip * 256}')
        p(f'v_add_u32 {v(tmp)}, {sT0}, {v(vCQ)}')
        for q in range(4):
            p(f'ds_read_b128 {v(dst + 4 * q, 4)}, {v(tmp)} offset:{32 * q}')

    def gemmk(g, chunks, acc, afrag, prev=None, hook=None, depth=4):
        steps = []
        n = 0
        for ci, nm in enumerate(chunks):
            for i in range(4):
                for o in range(2):
                    fb = vFB + 4 * (n % NFB)
                    st = dict(pre=[], reads=[], work=[])
                    if i == 0 and o == 0:
                        st['pre'].append(g.acq_step(chunks, ci, prev))
                    for q in range(2):
                        st['reads'].append(g.trr(fb + 2 * q, nm, vW5 + 3 * o, i * 2048 + q * 1024))
                    A = v(acc + 16 * o, 16)
                    st['work'].append(f'{M32} {A}, {v(fb, 4)}, {a(afrag(4 * ci + i), 4)}, {"0" if ci == 0 and i == 0 else A}')
                    if hook:
                        st['work'] += hook(4 * ci + i, o)
                    steps.append(st)
                    n += 1
        g.pipeline(steps, depth)
        g.release(chunks[-2:])

    def xchg_write(g, slot, regs, ad, xor):
        p = g.p
        p(f'v_add_u32 {v(ad)}, {sWL}, {v(vL16)}')
        p(f'v_add_u32 {v(ad)}, {slot * SLOT}, {v(ad)}')
        p(f'v_xor_b32 {v(ad + 1)}, {xor}, {v(ad)}')
        for q in range(4):
            p(f'ds_write_b128 {v(ad)}, {v(regs + 4 * q, 4)} offset:{q * 1024}')

    def g3_poll_addr(g):
        p = g.p
        t = v(vP)
        p(f'v_lshrrev_b32 {t}, 4, {v(vL)}')
        p(f'v_min_u32 {t}, 2, {t}')
        p(f'v_add_u32 {t}, {sR32}, {t}')
        p(f'v_max_u32 {t}, 1, {t}')
        p(f'v_min_u32 {t}, 64, {t}')
        p(f'v_and_b32 {v(vPA)}, 15, {v(vL)}')
        p(f'v_lshl_add_u32 {v(vPA)}, {t}, 5, {v(vPA)}')
        p(f'v_lshlrev_b32 {v(vPA)}, 2, {v(vPA)}')
        p(f'v_add_u32 {v(vPA)}, {WS_F1 - 128}, {v(vPA)}')

    def g3(g):
        p = g.p
        g.poll_check()
        g.stamp('h seen')
        acc = vACC
        p(f's_lshl3_add_u32 {sT4}, {sR32}, {sNW}')
        p(f's_lshl_b32 {sT4}, {sT4}, 12')
        loads = []
        for n in range(16):
            it = []
            if n & 3 == 0 and n:
                it.append(f's_add_u32 {sT4}, {sT4}, 8192')
            it.append(f'buffer_load_dwordx4 {a(128 + 4 * n, 4)}, {v(vL16)}, {srd(S_WS)}, {sT4} offen offset:{(n & 3) * 1024} sc1')
            loads.append(it)
        PRE = g.opt.get('g3pre', 10)
        for n in range(PRE):
            p.run(loads[n])
        g.cs_poll_addr()
        g.poll_issue()
        MR = vT
        p(f'v_mul_f32 {v(MR)}, {v(vMEAN)}, {v(vRSTD)}')
        red = []
        hk = {(5, 1): [g.cs_fetch], (13, 1): [lambda: red.extend(g.cs_reduce())], (15, 0): [lambda: p.run(red)]}

        def hook(n, o):
            it = list(hk.get((n, o), []))
            if o == 0:
                it += loads[n + PRE] if n + PRE < 16 else ([g.D(1)] if n + PRE >= 16 + g.opt.get('g3gap', 2) else [])
            return it
        g.gemmk(['W2_%d' % j for j in range(4)], acc, lambda n: 128 + 4 * n, hook=hook)
        g.stamp('g3 mfma done')
        xs = g.free.pop(0)
        g.xchg_write(xs, acc + 16, vT + 2, 0x1000)
        U = vT + 4
        for i in range(8):
            A = v(acc + 2 * i, 2)
            u = U + 2 * (i & 3)
            p(f'v_lshlrev_b32 {v(u)}, 16, {v(vXT + i)}')
            p(f'v_and_b32 {v(u + 1)}, 0xffff0000, {v(vXT + i)}')
            p(f'v_pk_add_f32 {A}, {A}, {v(MR, 2)} op_sel_hi:[1,0]')
            p(f'v_pk_fma_f32 {A}, {v(u, 2)}, {v(vRSTD, 2)}, {A} op_sel_hi:[1,0,1]')
        g.barrier()
        for q in range(4):
            p(f'ds_read_b128 {v(acc + 16 + 4 * q, 4)}, {v(vT + 3)} offset:{q * 1024}')
        g.xslot = xs
        p(f's_lshl4_add_u32 {sT1}, {sR32}, {sCN}')
        p(f's_lshl_b32 {sT0}, {sT1}, 11')
        p(f's_add_u32 {sT0}, {sT0}, {WS_X1}')
        for i in range(4):
            p(f'v_mov_b32 {v(vST + i)}, 0')
        toks = []
        for i in range(8):
            A = v(acc + 2 * i, 2)
            p(f'v_pk_add_f32 {A}, {A}, {v(acc + 16 + 2 * i, 2)}')
            p(f'v_cvt_pk_bf16_f32 {v(vX1K + i)}, {v(acc + 2 * i)}, {v(acc + 2 * i + 1)}')
            if i & 3 == 3:
                toks.append(p(f'buffer_store_dwordx4 {v(vX1K + (i & 4), 4)}, {v(vL16)}, {srd(S_WS)}, {sT0} offen offset:{(i >> 2) * 1024} sc1'))
        s0, s1, q0, q1 = [v(vST + i) for i in range(4)]
        for i in range(8):
            p(f'v_dot2c_f32_bf16 {v(vST + (i & 1))}, {sONE}, {v(vX1K + i)}')
            p(f'v_dot2c_f32_bf16 {v(vST + 2 + (i & 1))}, {v(vX1K + i)}, {v(vX1K + i)}')
        p(f's_lshl_b32 {sT1}, {sT1}, 8')
        p(f's_add_u32 {sT1}, {sT1}, {WS_ST1}')
        p(f'v_lshlrev_b32 {v(U)}, 2, {v(vL)}')
        p(f'v_add_f32 {s0}, {s0}, {s1}')
        p(f'v_add_f32 {q0}, {q0}, {q1}')
        p(f'v_permlane32_swap_b32 {s0}, {q0}')
        p(f'v_add_f32 {s0}, {s0}, {q0}')
        toks.append(p(f'buffer_store_dword {s0}, {v(U)}, {srd(S_WS)}, {sT1} offen sc1'))
        g.stamp('x1 stored')
        return g.publish(toks, WS_F2, sFI)

    def phi_items(g, acc, tile, cs16, out, T, W):
        p = g.p
        it = []
        P = T
        B = T + 16
        E = T + 32
        it.append(lambda: g.cs_read(tile, cs16, E))
        for i in range(0, 16, 2):
            it.append(f'v_pk_fma_f32 {v(acc + i, 2)}, {v(cs16 + i, 2)}, {v(vMEAN, 2)}, {v(acc + i, 2)} op_sel_hi:[1,0,1]')
        for i in range(0, 16, 2):
            it.append(f'v_pk_mul_f32 {v(acc + i, 2)}, {v(acc + i, 2)}, {v(vRSTD, 2)} op_sel_hi:[1,0]')
        for i in range(0, 16, 2):
            it.append(f'v_cvt_pk_bf16_f32 {v(B + i // 2)}, {v(acc + i)}, {v(acc + i + 1)}')
        it.append(f'{M32} {v(P, 16)}, {v(W, 4)}, {v(B, 4)}, 0')
        it.append(f'{M32} {v(P, 16)}, {v(W + 4, 4)}, {v(B + 4, 4)}, {v(P, 16)}')
        hs = []
        for hd in range(2):
            L = []
            q_ = P + 8 * hd
            X = acc if hd == 0 else cs16
            e = B if hd == 0 else E
            mx, nm, bp, bn = e, e + 1, e + 2, e + 4
            x = lambda i: v(q_ + i)
            L.append(f'v_max3_f32 {v(mx)}, {x(0)}, {x(1)}, {x(2)}')
            L.append(f'v_max3_f32 {v(nm)}, -{x(0)}, -{x(1)}, -{x(2)}')
            L.append(f'v_max3_f32 {v(mx)}, {v(mx)}, {x(3)}, {x(4)}')
            L.append(f'v_max3_f32 {v(nm)}, {v(nm)}, -{x(3)}, -{x(4)}')
            L.append(f'v_max3_f32 {v(mx)}, {v(mx)}, {x(5)}, {x(6)}')
            L.append(f'v_max3_f32 {v(nm)}, {v(nm)}, -{x(5)}, -{x(6)}')
            L.append(f'v_max_f32 {v(mx)}, {v(mx)}, {x(7)}')
            L.append(f'v_max_f32_e64 {v(nm)}, {v(nm)}, -{x(7)}')
            L.append(f'v_permlane32_swap_b32 {v(mx)}, {v(nm)}')
            L.append(f'v_max_f32 {v(mx)}, {v(mx)}, {v(nm)}')
            L.append(f'v_mul_f32 {v(bp)}, {hx(-LOG2E)}, {v(mx)}')
            L.append(f'v_mul_f32 {v(bn)}, {hx(-LOG2E)}, {v(mx)}')
            L.append(f'v_permlane32_swap_b32 {v(bp)}, {v(bn)}')
            ep, en = X, X + 8
            for i in range(0, 8, 2):
                L.append(f'v_pk_fma_f32 {v(ep + i, 2)}, {v(q_ + i, 2)}, {sL2}, {v(bp, 2)} op_sel_hi:[1,1,0]')
                L.append(f'v_pk_fma_f32 {v(en + i, 2)}, {v(q_ + i, 2)}, {sL2}, {v(bn, 2)} op_sel_hi:[1,1,0] neg_lo:[1,0,0] neg_hi:[1,0,0]')
            for i in range(16):
                L.append(f'v_exp_f32 {v(X + i)}, {v(X + i)}')
            sp, sn, t1, t2 = e, e + 2, e + 4, e + 6
            L.append(f'v_pk_add_f32 {v(sp, 2)}, {v(ep, 2)}, {v(ep + 2, 2)}')
            L.append(f'v_pk_add_f32 {v(sn, 2)}, {v(en, 2)}, {v(en + 2, 2)}')
            L.append(f'v_pk_add_f32 {v(t1, 2)}, {v(ep + 4, 2)}, {v(ep + 6, 2)}')
            L.append(f'v_pk_add_f32 {v(t2, 2)}, {v(en + 4, 2)}, {v(en + 6, 2)}')
            L.append(f'v_pk_add_f32 {v(sp, 2)}, {v(sp, 2)}, {v(t1, 2)}')
            L.append(f'v_pk_add_f32 {v(sn, 2)}, {v(sn, 2)}, {v(t2, 2)}')
            L.append(f'v_add_f32 {v(sp)}, {v(sp)}, {v(sp + 1)}')
            L.append(f'v_add_f32 {v(sn)}, {v(sn)}, {v(sn + 1)}')
            L.append(f'v_permlane32_swap_b32 {v(sp)}, {v(sn)}')
            L.append(f'v_add_f32 {v(sp)}, {v(sp)}, {v(sn)}')
            L.append(f'v_rcp_f32 {v(sp)}, {v(sp)}')
            L.append(f'v_mov_b32 {v(sn)}, {v(sp)}')
            L.append(f'v_permlane32_swap_b32 {v(sp)}, {v(sn)}')
            for i in range(0, 8, 2):
                L.append(f'v_pk_mul_f32 {v(ep + i, 2)}, {v(ep + i, 2)}, {v(sp, 2)} op_sel_hi:[1,0]')
                L.append(f'v_pk_mul_f32 {v(en + i, 2)}, {v(en + i, 2)}, {v(sn, 2)} op_sel_hi:[1,0]')
            for i in range(0, 16, 2):
                L.append(f'v_cvt_pk_bf16_f32 {v(out + 8 * hd + i // 2)}, {v(X + i)}, {v(X + i + 1)}')
            hs.append(L)
        for x, y in zip(*hs):
            it += [x, y]
        return it

    def wphi_addr(g, t):
        A0, A1 = v(vWPA), v(vWPA + 1)
        p = g.p
        return [f'v_bfe_u32 {A0}, {v(vL)}, 2, 2', f'v_lshlrev_b32 {A0}, 5, {A0}', f'v_lshl_add_u32 {A0}, {v(vCQ)}, 3, {A0}',
                f'v_and_b32 {t}, 3, {v(vL)}', f'v_lshl_add_u32 {A0}, {t}, 3, {A0}',
                lambda: (p(f's_lshl_b32 {sT0}, {sNW}, 11'), p(f's_add_u32 {sT0}, {sT0}, {M_PHI}'), p(f'v_add_u32 {A0}, {sT0}, {A0}')),
                f'v_and_b32 {t}, 16, {v(vL)}', f'v_lshlrev_b32 {t}, 5, {t}', f'v_xor_b32 {A1}, 512, {t}',
                f'v_add_u32 {A1}, {A0}, {A1}', f'v_add_u32 {A0}, {A0}, {t}']

    def wphi_read(g, W):
        return [f'ds_read_b64_tr_b16 {v(W + 4 * s + 2 * q, 2)}, {v(vWPA + s)} offset:{s * 1024 + q * 256}' for s in range(2) for q in range(2)]

    def ident_items(g, ID, t):
        p = g.p
        d, val = v(t), v(t + 1)
        idn = [f'v_and_b32 {d}, 31, {v(vL)}', f'v_lshrrev_b32 {val}, 2, {v(vCQ)}', f'v_sub_u32 {d}, {d}, {val}',
               f'v_lshlrev_b32 {val}, 4, {d}', f'v_and_b32 {val}, 16, {val}', f'v_lshlrev_b32 {val}, {val}, {v(t + 2)}', f'v_lshrrev_b32 {d}, 1, {d}']
        idn.insert(0, f'v_mov_b32 {v(t + 2)}, 0x3f80')
        fs = [(16 * blk + 8 * (i >> 1) + 2 * (i & 1)) // 2 for blk in range(2) for i in range(4)]
        for i in range(0, 8, 2):
            idn += [f'v_cmp_eq_u32 vcc, {fs[i]}, {d}', f'v_cmp_eq_u32 {sMSK}, {fs[i + 1]}, {d}',
                    f'v_cndmask_b32 {v(ID + i)}, 0, {val}, vcc', f'v_cndmask_b32 {v(ID + i + 1)}, 0, {val}, {sMSK}']
        return idn

    def kv_epilogue(g, pub_x1):
        p = g.p
        T = vT
        PH = vACC
        CS16 = vACC + 16
        ID = vACC + 48
        it = g.phi_items(vAK, 1, CS16, PH, T, vACC + 56)
        it = interleave(it, [g.D(1)] * g.opt.get('ksmdma', 14))
        it.insert(len(it) * 2 // 5, pub_x1)
        if g.opt.get('pg', 1) == 1:
            it.insert(len(it) * 2 // 5 + 1, g.touch_g)
        p.run(it)
        g.stamp('k softmax done')
        TR = vACC + 16
        for hd in range(2):
            p(f'{M32} {v(TR + 16 * hd, 16)}, {v(PH + 8 * hd, 4)}, {v(ID, 4)}, 0')
            p(f'{M32} {v(TR + 16 * hd, 16)}, {v(PH + 8 * hd + 4, 4)}, {v(ID + 4, 4)}, {v(TR + 16 * hd, 16)}')
        MN, RS, csV = T + 16, T + 32, T + 14
        p(f's_lshl_b32 {sT0}, {sMW}, 7')
        p(f's_add_u32 {sT0}, {sT0}, {M_MEAN}')
        p(f'v_add_u32 {v(T + 12)}, {sT0}, {v(vCQ)}')
        p(f'v_and_b32 {v(T + 13)}, 31, {v(vL)}')
        p(f's_lshl_b32 {sT0}, {sNW}, 7')
        p(f's_add_u32 {sT0}, {sT0}, {M_CSF + 2 * 256}')
        p(f'v_lshl_add_u32 {v(T + 13)}, {v(T + 13)}, 2, {sT0}')
        p(f'ds_read_b32 {v(csV)}, {v(T + 13)}')
        for q in range(4):
            p(f'ds_read_b128 {v(MN + 4 * q, 4)}, {v(T + 12)} offset:{32 * q}')
            p(f'ds_read_b128 {v(RS + 4 * q, 4)}, {v(T + 12)} offset:{256 + 32 * q}')
        g.dma(1)
        p(f'v_and_b32 {v(T + 12)}, 16, {v(vL)}')
        p(f'v_cmp_eq_u32 vcc, 0, {v(T + 12)}')
        p(f'v_mov_b32 {v(T + 13)}, {sONE}')
        VP = vAK
        for i in range(0, 16, 2):
            p(f'v_pk_fma_f32 {v(vAV + i, 2)}, {v(MN + i, 2)}, {v(csV, 2)}, {v(vAV + i, 2)} op_sel_hi:[1,0,1] neg_lo:[1,0,0] neg_hi:[1,0,0]')
        for i in range(0, 16, 2):
            p(f'v_pk_mul_f32 {v(vAV + i, 2)}, {v(vAV + i, 2)}, {v(RS + i, 2)}')
        for i in range(0, 16, 2):
            p(f'v_cvt_pk_bf16_f32 {v(VP + i // 2)}, {v(vAV + i)}, {v(vAV + i + 1)}')
        g.dma(1)
        V0, V1 = vAK + 8, T
        for i in range(8):
            p(f'v_cndmask_b32 {v(V0 + i)}, {v(T + 13)}, {v(VP + i)}, vcc')
            p(f'v_cndmask_b32 {v(V1 + i)}, {v(VP + i)}, {v(T + 13)}, vcc')
        PT = T + 16
        for hd in range(2):
            for i in range(0, 16, 2):
                p(f'v_cvt_pk_bf16_f32 {v(PT + 8 * hd + i // 2)}, {v(TR + 16 * hd + i)}, {v(TR + 16 * hd + i + 1)}')
        KV = vACC + 16
        for s in range(2):
            for hd in range(2):
                Vm = V0 if hd == 0 else V1
                D = v(KV + 16 * hd, 16)
                p(f'{M32} {D}, {v(PT + 8 * hd + 4 * s, 4)}, {v(Vm + 4 * s, 4)}, {"0" if s == 0 else D}')
        g.stamp('kv mfma issued')
        g.dma(2)
        p(f's_cmp_eq_u32 {sMW}, 0')
        p('s_cselect_b64 vcc, -1, 0')
        p(f's_lshl1_add_u32 {sT1}, {sCN}, {sMW}')
        p(f's_lshl_b32 {sT3}, {sT1}, 5')
        p(f's_add_u32 {sT3}, {sT3}, {sM}')
        p(f's_lshl_b32 {sT3}, {sT3}, 2')
        p(f's_lshl_b32 {sT1}, {sT1}, 7')
        p(f's_add_u32 {sT1}, {sT1}, {sM}')
        p(f's_lshl_b32 {sT1}, {sT1}, 10')
        p(f's_add_u32 {sT1}, {sT1}, {WS_KVP}')
        S_, K_ = T + 16, T + 32
        for i in range(16):
            p(f'v_cndmask_b32 {v(S_ + i)}, {v(KV + i)}, {v(KV + 16 + i)}, vcc')
        g.barrier()
        g.xchg_write(g.xslot, S_, T + 12, 0x2000)
        for i in range(16):
            p(f'v_cndmask_b32 {v(K_ + i)}, {v(KV + 16 + i)}, {v(KV + i)}, vcc')
        g.barrier()
        for q in range(4):
            p(f'ds_read_b128 {v(S_ + 4 * q, 4)}, {v(T + 13)} offset:{q * 1024}')
        g.pending_free.append(g.xslot)
        toks = []
        for q in range(4):
            for i in range(0, 4, 2):
                p(f'v_pk_add_f32 {v(K_ + 4 * q + i, 2)}, {v(K_ + 4 * q + i, 2)}, {v(S_ + 4 * q + i, 2)}')
            toks.append(p(f'buffer_store_dwordx4 {v(K_ + 4 * q, 4)}, {v(vL16)}, {srd(S_WS)}, {sT1} offen sc1'))
            if q < 3:
                p(f's_add_u32 {sT1}, {sT1}, 32768')
        return g.publish(toks, WS_FK, sT3)

    def reducer_poll_addr(g):
        p = g.p
        p(f'v_and_b32 {v(vPA)}, 31, {v(vL)}')
        p(f's_lshr_b32 {sT1}, {sM}, 3')
        p(f's_lshl2_add_u32 {sT0}, {sC}, {sT1}')
        p(f's_lshl_b32 {sT0}, {sT0}, 7')
        p(f's_add_u32 {sT0}, {sT0}, {WS_FK}')
        p(f'v_lshl_add_u32 {v(vPA)}, {v(vPA)}, 2, {sT0}')

    def reducer_issue(g):
        p = g.p
        g.poll_check()
        ad, t = v(vT + 48), v(vT + 49)
        p(f'v_lshrrev_b32 {ad}, 3, {v(vL)}')
        p(f'v_and_b32 {t}, 7, {v(vL)}')
        p(f'v_lshlrev_b32 {t}, 4, {t}')
        p(f'v_lshl_add_u32 {ad}, {ad}, 10, {t}')
        p(f's_lshr_b32 {sT1}, {sM}, 1')
        p(f's_lshl4_add_u32 {sT0}, {sC}, {sT1}')
        p(f's_lshl_b32 {sT0}, {sT0}, 8')
        p(f's_and_b32 {sT1}, {sM}, 1')
        p(f's_lshl2_add_u32 {sT1}, {sT1}, {sW}')
        p(f's_add_u32 {sT0}, {sT0}, {sT1}')
        p(f's_lshl_b32 {sT0}, {sT0}, 7')
        p(f's_add_u32 {sT2}, {sT0}, {WS_KVP}')
        return [lambda u=u: (p(f'buffer_load_dwordx4 {v(vAV + 4 * u, 4)}, {ad}, {srd(S_WS)}, {sT2} offen sc1'), p(f's_add_u32 {sT2}, {sT2}, 8192')) for u in range(4)]

    def reducer_items(g):
        p = g.p
        R = vAV
        it = []
        for i in range(4):
            it += [f'v_add_f32 {v(R + i)}, {v(R + i)}, {v(R + 4 + i)}', f'v_add_f32 {v(R + 8 + i)}, {v(R + 8 + i)}, {v(R + 12 + i)}']
        for i in range(4):
            it.append(f'v_add_f32 {v(R + i)}, {v(R + i)}, {v(R + 8 + i)}')
        ad = v(R + 8)
        it += [f'v_cmp_gt_u32 {sMSK}, 8, {v(vL)}', f'v_mov_b32 {ad}, 0x{OOB:x}']
        for i in range(4):
            it.append(f'v_add_f32_dpp {v(R + 4 + i)}, {v(R + i)}, {v(R + i)} row_ror:8 row_mask:0xf bank_mask:0xf')
        it.append(f'v_cndmask_b32 {ad}, {ad}, {v(vL16)}, {sMSK}')
        for sw in ('v_permlane16_swap_b32', 'v_permlane32_swap_b32'):
            it += [f'v_mov_b32 {v(R + i)}, {v(R + 4 + i)}' for i in range(4)]
            it += [f'{sw} {v(R + i)}, {v(R + 4 + i)}' for i in range(4)]
            it += [f'v_add_f32 {v(R + 4 + i)}, {v(R + i)}, {v(R + 4 + i)}' for i in range(4)]
        it += [f'v_cvt_pk_bf16_f32 {v(R)}, {v(R + 4)}, {v(R + 5)}', f'v_cvt_pk_bf16_f32 {v(R + 1)}, {v(R + 6)}, {v(R + 7)}']
        box = []

        def store():
            p(f's_lshr_b32 {sT1}, {sM}, 2')
            p(f's_lshl3_add_u32 {sT0}, {sC}, {sT1}')
            p(f's_and_b32 {sT1}, {sM}, 1')
            p(f's_lshl1_add_u32 {sT0}, {sT0}, {sT1}')
            p(f's_lshl2_add_u32 {sT0}, {sT0}, {sW}')
            p(f's_lshl_b32 {sT0}, {sT0}, 7')
            p(f's_and_b32 {sT1}, {sM}, 2')
            p(f's_lshl2_add_u32 {sT0}, {sT1}, {sT0}')
            p(f's_add_u32 {sT0}, {sT0}, {WS_KVF}')
            box.append(p(f'buffer_store_dwordx2 {v(R, 2)}, {ad}, {srd(S_WS)}, {sT0} offen sc1'))
        it.append(store)

        def idx():
            p(f's_lshl_b32 {sT0}, {sC}, 5')
            p(f's_add_u32 {sT0}, {sT0}, {sM}')
            p(f's_lshl2_add_u32 {sT0}, {sT0}, {sW}')
            p(f's_lshl_b32 {sT0}, {sT0}, 2')
        return it, g.publish(box, WS_FR, idx)

    def frag_setup(g):
        p = g.p
        sH2, sOB = sXB, sQB
        p(f's_mul_i32 {sH2}, {sR32}, 14')
        p(f's_add_u32 {sH2}, {sH2}, {sNW}')
        p(f's_lshl_b32 {sH2}, {sH2}, 13')
        p(f's_add_u32 {sH2}, {sH2}, {WS_H2}')
        p(f's_lshl3_add_u32 {sOB}, {sR32}, {sNW}')
        p(f's_lshl_b32 {sOB}, {sOB}, 12')
        p(f's_add_u32 {sOB}, {sOB}, {WS_O}')
        seq = []
        for j in range(14):
            for i in range(4):
                seq.append((sH2, (16 * j if j < 7 else 16 * (j - 7) + 4) * 1024, i))
        for j in range(4):
            for i in range(4):
                seq.append((sOB, j * 8192, i))
        g.seq, g.fn, g.flim = seq, 0, 0

    def go(g):
        p = g.p
        if g.fn < g.flim:
            base, off, u = g.seq[g.fn]
            if u == 0:
                p(f's_add_u32 {sT4}, {base}, {off}')
            p(f'buffer_load_dwordx4 {a(4 * g.fn % 256, 4)}, {v(vL16)}, {srd(S_WS)}, {sT4} offen offset:{u * 1024} sc1')
            g.fn += 1
        else:
            g.dma(1)

    def dgo(g):
        if g.can_dma():
            g.dma(1)
        else:
            g.go()

    def opener(g, newlim, nextaddr):
        def f():
            g.poll_check()
            g.flim = newlim
            if nextaddr:
                nextaddr()
        return f

    def g4(g):
        p = g.p
        T = vT
        p(f's_lshl_b32 {sT4}, {sI4R}, 15')
        p(f's_add_u32 {sT4}, {sT4}, {WS_X1}')
        p(f's_lshl_b32 {sT2}, {sI4R}, 12')
        p(f's_add_u32 {sT2}, {sT2}, {WS_ST1}')
        p(f'v_lshlrev_b32 {v(T)}, 2, {v(vL)}')
        p(f's_mul_i32 {sT3}, {sI4R}, 14')
        p(f's_add_u32 {sT3}, {sT3}, {sC14}')
        p(f's_lshl_b32 {sT3}, {sT3}, 13')
        p(f's_add_u32 {sT3}, {sT3}, {WS_H2}')
        g.poll_check()
        g.stamp('x1 seen')
        loads = []
        for k in range(32):
            it = []
            if k & 3 == 0 and k:
                it.append(f's_add_u32 {sT4}, {sT4}, 4096')
            it.append(f'buffer_load_dwordx4 {a(128 + 4 * k, 4)}, {v(vL16)}, {srd(S_WS4)}, {sT4} offen offset:{(k & 3) * 1024} sc1')
            loads.append(it)
        PRE = g.opt.get('g4pre', 10)
        for k in range(PRE):
            p.run(loads[k])
        stl = [f'buffer_load_dword {v(vAV + c)}, {v(T)}, {srd(S_WS4)}, {sT2} offen offset:{c * 256} sc1' for c in range(16)]
        g.reducer_poll_addr()
        g.frag_setup()
        g.acquire(['W3_%d' % j for j in range(4)])
        g.stamp('w3a acquired')

        def mk(tiles, extra=None):
            steps = []
            n = 0
            for k in range(32):
                for tt in tiles:
                    nm = 'W3_%d' % (4 * (tt >> 1) + (k >> 3))
                    fb = vFB + 4 * (n % NFB)
                    st = dict(reads=[], work=[])
                    for q in range(2):
                        st['reads'].append(g.trr(fb + 2 * q, nm, vW4 + 3 * (tt & 1), (k & 7) * 2048 + q * 1024))
                    A = v(vACC + 16 * tt, 16)
                    st['work'].append(f'{M32} {A}, {v(fb, 4)}, {a(128 + 4 * k, 4)}, {"0" if k == 0 else A}')
                    if extra and (k, tt & 1) in extra:
                        st['work'] += extra[(k, tt & 1)]
                    steps.append(st)
                    n += 1
            return steps
        extra = {(k, 1): list(loads[k + PRE]) for k in range(32 - PRE)}
        for k in range(32 - PRE, 32):
            extra[(k, 1)] = [g.D(1)]
        for c in range(16):
            extra[(c, 0)] = [stl[c]]
        extra[(17, 0)] = [g.poll_issue]
        A = vAV
        CA, nm, k0, k1, S, R = vCSA + 2, vST + 2, vST + 4, vCSA, vST, vCSA + 3
        sh = []
        for st_ in (8, 4, 2):
            sh += [f'v_add_f32 {v(A + i)}, {v(A + i)}, {v(A + st_ + i)}' for i in range(st_)]
        sh += [f'v_add_f32 {v(vST)}, {v(A)}, {v(A + 1)}', f'v_add_f32 {v(vST + 1)}, {v(A)}, {v(A + 1)}',
               f'v_add_u32 {v(CA)}, {M_CSF + 768}, {v(vCQ)}', 's_nop 0', f'v_permlane32_swap_b32 {v(vST)}, {v(vST + 1)}']
        sh += g.ln_items(v(vST), v(vST + 1), v(nm), v(R), v(vST + 3))
        sh += [f'v_sub_f32 {v(nm)}, 0, {v(nm)}', f'v_mul_f32 {v(k0)}, {hx(GK0)}, {v(R)}', f'v_mul_f32 {v(k1)}, {v(R)}, {v(R)}',
               f'v_mul_f32 {v(k1)}, {v(k1)}, {v(R)}', f'v_mul_f32 {v(k1)}, {hx(GK1)}, {v(k1)}']
        rl = []
        extra[(29, 0)] = [lambda: rl.extend(g.reducer_issue()), lambda: rl[0]()]
        extra[(30, 0)] = [lambda: rl[1]()]
        extra[(31, 0)] = [lambda: rl[2]()]
        extra[(31, 1)] = [lambda: rl[3]()]
        g.pipeline(mk([0, 1], extra), 4, sh, g.opt.get('g4sh', 36))
        g.release(['W3_%d' % j for j in range(4)])
        g.stamp('g4 phase a done')
        g.acquire(['W3_%d' % j for j in range(4, 8)], drain=False)
        g.stamp('w3b acquired')

        def epi(tts, toks):
            it = []
            for tt in tts:
                it += [f'ds_read_b128 {v(T + 16 * (tt & 1) + 4 * q, 4)}, {v(CA)} offset:{tt * 128 + 32 * q}' for q in range(4)]
            for tt in tts:
                cs = T + 16 * (tt & 1)
                out = T + 32
                gi = g.gelu_items(vACC + 16 * tt, 16, cs, nm, k0, k1, S, out, T + 40)
                half = len(gi) // 2
                for s in range(2):
                    it += gi[s * half:(s + 1) * half]
                    it.append(lambda s=s, tt=tt: toks.append(p(f'buffer_store_dwordx4 {v(out + 4 * s, 4)}, {v(vL16)}, {srd(S_WS4)}, {sT3} offen offset:{(tt & 1) * 2048 + s * 1024} sc1')))
            return it

        def idx():
            p(f's_lshl_b32 {sT0}, {sI4R}, 5')
            p(f's_add_u32 {sT0}, {sT0}, {sC14}')
            p(f's_lshl_b32 {sT0}, {sT0}, 2')
        ta, tb = [], []
        p.run(interleave(epi([0, 1], ta), [g.D(1)] * g.opt.get('e01dma', 10)))
        p(f's_add_u32 {sT3}, {sT3}, 4096')
        g.line_poll_addr(WS_F3A, sR32, 13)
        g.stamp('g4 epi01 done')
        ritems, pub_r = g.reducer_items()
        extra = {(k, 1): [g.D(1)] for k in range(0, 32)}
        extra[(g.opt.get('pub3a', 8), 0)] = [g.publish(ta, WS_F3A, idx, ws=S_WS4)]
        extra[(24, 0)] = [pub_r]
        g.pipeline(mk([2, 3], extra), 4, ritems, 4)
        g.stamp('g4 phase b done')
        g.release(['W3_%d' % j for j in range(4, 8)])
        g.barrier(drain=False)
        e23 = interleave(epi([2, 3], tb), [g.D(1)] * g.opt.get('e23dma', 16))
        e23.insert(len(e23) * g.opt.get('pa3', 6) // 10, g.poll_issue)
        p.run(e23)
        g.stamp('g4 done')
        return g.publish(tb, WS_F3B, idx, ws=S_WS4)

    def o_calc(g, PH, fill):
        p = g.p
        T = vT
        p(f's_lshl4_add_u32 {sT1}, {sR32}, {sCN}')
        p(f's_lshl_b32 {sT1}, {sT1}, 11')
        p(f's_add_u32 {sT1}, {sT1}, {WS_O}')
        D = vACC + 32
        KF = vACC + 16
        for s in range(2):
            for hd in range(2):
                A = v(D + 16 * hd, 16)
                p(f'{M32} {A}, {v(KF + 8 * hd + 4 * s, 4)}, {v(PH + 8 * hd + 4 * s, 4)}, {"0" if s == 0 else A}')
        p.run(fill)
        toks = []
        for hd in range(2):
            den = D + 16 * hd + 8 * (1 - hd)
            p(f'v_add_f32 {v(den)}, {hx(1e-6)}, {v(den)}')
            p(f'v_rcp_f32 {v(den)}, {v(den)}')
        for hd in range(2):
            num = D + 16 * hd + 8 * hd
            den = D + 16 * hd + 8 * (1 - hd)
            for i in range(0, 8, 2):
                p(f'v_pk_mul_f32 {v(num + i, 2)}, {v(num + i, 2)}, {v(den, 2)} op_sel_hi:[1,0]')
            for i in range(0, 8, 2):
                p(f'v_cvt_pk_bf16_f32 {v(T + 4 * hd + i // 2)}, {v(num + i)}, {v(num + i + 1)}')
            toks.append(p(f'buffer_store_dwordx4 {v(T + 4 * hd, 4)}, {v(vL16)}, {srd(S_WS)}, {sT1} offen offset:{hd * 1024} sc1'))
        return g.publish(toks, WS_FO, sFI)

    def fr_poll_addr(g):
        p = g.p
        p(f's_lshl_b32 {sT0}, {sCN}, 8')
        p(f's_add_u32 {sT0}, {sT0}, {WS_FR}')
        p(f'v_lshl_add_u32 {v(vPA)}, {v(vL)}, 2, {sT0}')

    def tail(g, pub_h2b):
        p = g.p
        T = vT
        g.opener(28, g.fr_poll_addr)()
        g.stamp('h2a seen')
        g.poll_issue()
        PH = vAV
        p.run(g.wphi_read(T + 24))

        def kvops():
            g.poll_check()
            g.stamp('fr seen')
            p(f's_lshl_b32 {sT1}, {sCN}, 12')
            p(f's_add_u32 {sT1}, {sT1}, {WS_KVF}')
            for i in range(4):
                p(f'buffer_load_dwordx4 {v(vACC + 16 + 4 * i, 4)}, {v(vL16)}, {srd(S_WS)}, {sT1} offen offset:{i * 1024} sc1')
            g.line_poll_addr(WS_F3B, sR32, 13)
        it = interleave(g.phi_items(vAK, 0, vACC, PH, T, T + 24), [g.go] * g.opt.get('qsmgo', 20))
        it.insert(len(it) // 2, kvops)
        it.insert(len(it) // 4, pub_h2b)
        p.run(it)
        g.stamp('q softmax done')
        pub_o = g.o_calc(PH, [g.go, g.go])
        g.stamp('o stored')
        print('at tail start: frags issued', g.fn, 'next chunk', g.chunks[g.nxt].name, g.chunks[g.nxt].issued)
        ob, oo = g.opt.get('ob', 12), g.opt.get('oo', 36)
        hooks = {(5, 1): [pub_o], (ob - 6, 0): [g.poll_issue], (ob, 1): [g.opener(56, lambda: g.line_poll_addr(WS_FO, sR32)), g.St('h2b seen')],
                 (oo - 6, 0): [g.poll_issue], (oo, 1): [g.opener(72, None), g.St('o seen')]}
        areg = lambda i: 4 * i % 256

        wnames = ['W4_%d' % j for j in range(14)] + ['WO_%d' % j for j in range(4)]
        left = lambda: (72 - g.fn) + sum(4 - g.byname[n].issued for n in wnames)
        credit = [0.0]
        endat = 144 - g.opt.get('tailend', 16)

        def paced(step):
            def f():
                if step < endat:
                    credit[0] += left() / (endat - step)
                else:
                    credit[0] = 9
                k = 0
                while credit[0] >= 1.0 and left() and k < 2:
                    k += 1
                    fl = g.fn * 2 - step if g.fn < g.flim and g.fn * 2 - step < 100 else None
                    dl = None
                    if g.can_dma():
                        c = g.chunks[g.nxt]
                        dl = wnames.index(c.name) * 8 + c.issued * 2 - step - g.opt.get('dmabias', 8)
                    if fl is None and dl is None:
                        credit[0] = min(credit[0], 2.0)
                        break
                    if dl is None or (fl is not None and fl <= dl):
                        g.go()
                    else:
                        g.dma(1)
                    credit[0] -= 1.0
            return f

        def hook(base):
            return lambda n, o: list(hooks.get((base + n, o), [])) + [paced(2 * (base + n) + o)]
        acc5, acc6 = vACC, vACC + 32
        g.gemmk(['W4_%d' % j for j in range(14)], acc5, areg, hook=hook(0))
        g.stamp('g5 done')
        xs5 = g.free.pop(0)
        h6 = hook(56)

        def hook6(n, o):
            it = h6(n, o)
            if (n, o) == (1, 0):
                it.append(lambda: g.xchg_write(xs5, acc5 + 16, T, 0x1000))
            if (n, o) == (6, 0):
                it += [f'ds_read_b128 {v(acc5 + 16 + 4 * q, 4)}, {v(T + 1)} offset:{q * 1024}' for q in range(4)]
            return it
        g.gemmk(['WO_%d' % j for j in range(4)], acc6, lambda n: areg(56 + n), hook=hook6)
        assert g.fn == 72
        g.stamp('g6 done')
        xs6 = g.free.pop(0)
        U = T + 4
        E = T + 16
        for i in range(8):
            Y = v(acc5 + 2 * i, 2)
            u = U + 2 * (i & 3)
            p(f'v_lshlrev_b32 {v(u)}, 16, {v(vX1K + i)}')
            p(f'v_and_b32 {v(u + 1)}, 0xffff0000, {v(vX1K + i)}')
            p(f'v_add_f32 {v(acc5 + 2 * i)}, {v(acc5 + 2 * i)}, {v(acc5 + 16 + 2 * i)}')
            p(f'v_add_f32 {v(acc5 + 2 * i + 1)}, {v(acc5 + 2 * i + 1)}, {v(acc5 + 17 + 2 * i)}')
            p(f'v_add_f32 {v(acc5 + 2 * i)}, {v(acc5 + 2 * i)}, {v(u)}')
            p(f'v_add_f32 {v(acc5 + 2 * i + 1)}, {v(acc5 + 2 * i + 1)}, {v(u + 1)}')
            if i == 1:
                g.xchg_write(xs6, acc6 + 16, T + 2, 0x1000)
        g.barrier()
        for q in range(4):
            p(f'ds_read_b128 {v(acc6 + 16 + 4 * q, 4)}, {v(T + 3)} offset:{q * 1024}')
        for i in range(8):
            p(f'v_pk_mul_f32 {v(E + 2 * i, 2)}, {v(acc5 + 2 * i, 2)}, {sL2} neg_lo:[1,0] neg_hi:[1,0]')
        for i in range(16):
            p(f'v_exp_f32 {v(E + i)}, {v(E + i)}')
        for i in range(16):
            p(f'v_add_f32 {v(E + i)}, 1.0, {v(E + i)}')
        for i in range(16):
            p(f'v_rcp_f32 {v(E + i)}, {v(E + i)}')
        for i in range(8):
            p(f'v_pk_add_f32 {v(acc6 + 2 * i, 2)}, {v(acc6 + 2 * i, 2)}, {v(acc6 + 16 + 2 * i, 2)}')
            p(f'v_pk_mul_f32 {v(E + 2 * i, 2)}, {v(E + 2 * i, 2)}, {v(acc5 + 2 * i, 2)}')
        for i in range(8):
            u = U + 2 * (i & 3)
            p(f'v_lshlrev_b32 {v(u)}, 16, {v(vXT + i)}')
            p(f'v_and_b32 {v(u + 1)}, 0xffff0000, {v(vXT + i)}')
            p(f'v_pk_fma_f32 {v(E + 2 * i, 2)}, {v(E + 2 * i, 2)}, {v(acc6 + 2 * i, 2)}, {v(u, 2)}')
            p(f'v_cvt_pk_bf16_f32 {v(T + 32 + i)}, {v(E + 2 * i)}, {v(E + 2 * i + 1)}')
            if i & 1:
                p(f'buffer_store_dwordx2 {v(T + 32 + i - 1, 2)}, {v(vXO)}, {srd(S_OUT)}, 0 offen offset:{16 * (i >> 1)}')

    def build(g):
        p = g.p
        g.setup()
        pub_h = g.g2()
        if g.stop <= 1:
            pub_h()
            return g.finish()
        cs_store, cs_wait, cs_pub = g.cs_produce()
        g.stamp('cs produced')
        g.g3_poll_addr()
        ex = {1: [cs_store], g.opt.get('pubh', 10): [pub_h], 13: [cs_pub]}
        g.qkv_tile('K', vAK, True, extra=ex, pre={16: [cs_wait]}, dma_every=g.opt.get('kdma', 1),
                   shadow=g.wphi_addr(v(vT + 20)) + g.ident_items(vACC + 48, vT + 20), frm=2)
        g.stamp('k tile done')
        ex = {20: [g.poll_issue]}
        g.qkv_tile('V', vAV, False, extra=ex, pre={0: [lambda: p.wait(vm=[g.tok_phi])]}, dma_every=g.opt.get('vdma', 2),
                   shadow=g.wphi_read(vACC + 56), frm=2)
        g.stamp('kv tiles done')
        pub_x1 = g.g3()
        if g.stop <= 2:
            pub_x1()
            return g.finish()
        pub_kv = g.kv_epilogue(pub_x1)
        g.stamp('kvp stored')
        g.line_poll_addr(WS_F2, sI4R)
        ex = {12: [pub_kv], 22: [g.poll_issue]}
        if g.opt.get('ts2', 1):
            ex[14] = [lambda: g.touch_s(2)]
        g.qkv_tile('Q', vAK, True, extra=ex, dma_every=g.opt.get('qdma', 2))
        g.stamp('q tile done')
        if g.stop <= 3:
            return g.finish()
        pub_h2b = g.g4()
        if g.stop <= 4:
            pub_h2b()
            return g.finish()
        g.tail(pub_h2b)
        g.stamp('end')
        return g.finish()

    def finish(g):
        p = g.p
        skip = p.newlabel('L_noep')
        p(f's_cmp_eq_u32 {sTAG}, 0')
        p(f's_cbranch_scc0 {skip}')
        st = p.snapshot()
        p(f's_mov_b32 {sT0}, {WS_EP}')
        p(f'buffer_store_dword {v(vTAG)}, {v(vF0)}, {srd(S_WS)}, {sT0} offen sc1')
        p.label(skip)
        p.merge(st)
        if g.stamps:
            p.wait_all(lg=True)
            for i in range(16):
                if i < g.nst or i in (11, 12):
                    p(f'v_mov_b32 {v(vT + i)}, s{STAMP0 + 2 * i}')
                else:
                    p(f'v_mov_b32 {v(vT + i)}, 0')
            p(f's_lshl3_add_u32 {sT0}, {sM}, {sC}')
            p(f's_lshl2_add_u32 {sT0}, {sT0}, {sW}')
            p(f's_lshl_b32 {sT0}, {sT0}, 6')
            p(f's_add_u32 {sT0}, {sT0}, {WS_DBG}')
            for q in range(4):
                p(f'buffer_store_dwordx4 {v(vT + 4 * q, 4)}, {v(vF0)}, {srd(S_WS)}, {sT0} offen offset:{16 * q}')
        p.label('L_end')
        p('s_endpgm')
        hdr = open(os.path.join(os.path.dirname(os.path.abspath(__file__)), 'header.txt')).read()
        return wrap(p.text(), 256, 256, LDS_BYTES, 256, 256, 102, hdr)


if __name__ == '__main__':
    import argparse
    ap = argparse.ArgumentParser()
    ap.add_argument('-o', default='k.s')
    ap.add_argument('--stop', type=int, default=99)
    ap.add_argument('--stamps', default='')
    ap.add_argument('--burst', type=int, default=9)
    ap.add_argument('--opt', default='')
    args = ap.parse_args()
    opt = {kv.split('=')[0]: int(kv.split('=')[1]) for kv in args.opt.split(',') if kv}
    g = Gen(args.stop, args.stamps.split(',') if args.stamps else False, args.burst, opt)
    txt = g.build()
    open(args.o, 'w').write(txt)
    print('instrs', g.p.count, 'nops', g.p.nops, 'bytes', len(txt), 'NV', NV, 'maxv', g.p.maxv, 'maxa', g.p.maxa, 'maxs', g.p.maxs)
    print('stamps', ','.join(g.stnames))
    open(args.o + '.names', 'w').write(','.join(g.stnames) + ('|cyc' if opt.get('cyc') else ''))
```
